```python
import torch

def _softmax(x, axis=-1):
    return torch.softmax(x, dim=axis)
def _gelu(x):
    return torch.nn.functional.gelu(x, approximate="tanh")
def _silu(x):
    return torch.nn.functional.silu(x)
def _sigmoid(x):
    return torch.sigmoid(x)
def _layernorm(x, axis=-1, eps=1e-5):
    m = x.mean(dim=axis, keepdim=True)
    v = x.var(dim=axis, keepdim=True, unbiased=False)
    return (x - m) / torch.sqrt(v + eps)
def _scatter_add(tgt, idx, src, axis=0):
    return tgt.clone().index_add_(axis, idx, src)
def _segment_sum(src, seg, n):
    out = torch.zeros((n,) + src.shape[1:], dtype=src.dtype)
    return out.index_add_(0, seg, src)
def _pad(x, pw):
    flat = tuple(v for pair in reversed(pw) for v in pair)
    return torch.nn.functional.pad(x, flat)

kernel_name = 'sequential_preLN__spectral_fnet__swiglu_ffn__prompt'

def setup_inputs():

    _w = (lambda a: (lambda t: t.to(torch.bfloat16) if t.is_floating_point() else t)(torch.as_tensor(a)))
    def _A_setup():
        B, S, D = 1, 2048, 576
        ns = torch.arange(S)[:, None] * torch.arange(S)[None, :]
        nd = torch.arange(D)[:, None] * torch.arange(D)[None, :]
        Ws_re = torch.cos(-2.0 * torch.pi * ns / S).to(float)
        Ws_im = torch.sin(-2.0 * torch.pi * ns / S).to(float)
        Wd_re = torch.cos(-2.0 * torch.pi * nd / D).to(float)
        Wd_im = torch.sin(-2.0 * torch.pi * nd / D).to(float)
        return {
            "x": _w((lambda *s: torch.randn(*s, dtype=torch.bfloat16) * 0.05)(B, S, D)),
            "dft_seq_re": _w(Ws_re),
            "dft_seq_im": _w(Ws_im),
            "dft_hid_re": _w(Wd_re),
            "dft_hid_im": _w(Wd_im),
        }
    _A_in = _A_setup()

    def _B_setup():
        B, S, D, F = 1, 2048, 576, 4608
        return {
            "x": _w((lambda *s: torch.randn(*s, dtype=torch.bfloat16) * 0.05)(B, S, D)),
            "w_gate": _w((lambda *s: torch.randn(*s, dtype=torch.bfloat16) * 0.2)(D, F)),
            "w_up": _w((lambda *s: torch.randn(*s, dtype=torch.bfloat16) * 0.2)(D, F)),
            "w_down": _w((lambda *s: torch.randn(*s, dtype=torch.bfloat16) * 0.2)(F, D)),
        }
    _B_in = _B_setup()

    return {
        "A_x": _A_in["x"],
        "A_dft_seq_re": _A_in["dft_seq_re"],
        "A_dft_seq_im": _A_in["dft_seq_im"],
        "A_dft_hid_re": _A_in["dft_hid_re"],
        "A_dft_hid_im": _A_in["dft_hid_im"],
        "B_x": _B_in["x"],
        "B_w_gate": _B_in["w_gate"],
        "B_w_up": _B_in["w_up"],
        "B_w_down": _B_in["w_down"],
    }

def reference(A_x, A_dft_seq_re, A_dft_seq_im, A_dft_hid_re, A_dft_hid_im, B_x, B_w_gate, B_w_up, B_w_down):
    def _A_ref(x, dft_seq_re, dft_seq_im, dft_hid_re, dft_hid_im):
        a = torch.einsum("bsd,ed->bse", x, dft_hid_re)
        b = torch.einsum("bsd,ed->bse", x, dft_hid_im)
        y = torch.einsum("ts,bse->bte", dft_seq_re, a) - torch.einsum("ts,bse->bte", dft_seq_im, b)
        return y

    def _B_ref(x, w_gate, w_up, w_down):
        g = _silu(x @ w_gate)
        u = x @ w_up
        return (g * u) @ w_down

    x = A_x
    h = x + _A_ref(_layernorm(x, axis=-1), A_dft_seq_re, A_dft_seq_im, A_dft_hid_re, A_dft_hid_im)
    h2 = h + _B_ref(_layernorm(h, axis=-1), B_w_gate, B_w_up, B_w_down)
    return h2
```

```python
import re

def expand(op):
    op = op.strip()
    neg = op.lstrip('-')
    m = re.fullmatch(r'(?:abs\()?([vas])\[(\d+):(\d+)\]\)?', neg)
    if m:
        return [f"{m.group(1)}{i}" for i in range(int(m.group(2)), int(m.group(3)) + 1)]
    m = re.fullmatch(r'(?:abs\(|\|)?([vas])(\d+)(?:\)|\|)?', neg)
    if m:
        return [f"{m.group(1)}{m.group(2)}"]
    if neg in ('vcc', 'exec', 'm0', 'scc'):
        return [neg]
    if neg in ('vcc_lo', 'vcc_hi'):
        return ['vcc']
    if neg in ('exec_lo', 'exec_hi'):
        return ['exec']
    return []

TRANS = ('v_exp_f32', 'v_log_f32', 'v_rcp_f32', 'v_rsq_f32', 'v_sqrt_f32', 'v_sin_f32', 'v_cos_f32')

class Ins:
    __slots__ = ('text', 'mn', 'kind', 'rd', 'wr', 'tok', 'needs', 'srcc', 'srcab', 'passes', 'ws', 'comment', 'dpp', 'sdwa', 'data')
    def __init__(self, text, tok=None, needs=(), comment=None):
        self.text = text.strip()
        self.tok = tok
        self.needs = list(needs)
        self.comment = comment
        self.srcc = []; self.srcab = []; self.passes = 0; self.ws = 1
        self.data = []
        t = self.text
        parts = t.split(None, 1)
        mn = parts[0]
        self.mn = mn
        rest = parts[1] if len(parts) > 1 else ''
        ops = []; depth = 0; cur = ''
        for ch in rest:
            if ch in '[(': depth += 1
            if ch in '])': depth -= 1
            if ch == ',' and depth == 0:
                ops.append(cur.strip()); cur = ''
            else:
                cur += ch
        if cur.strip(): ops.append(cur.strip())
        mods = ''
        if ops:
            l = ops[-1].split(None, 1)
            ops[-1] = l[0]
            if len(l) > 1: mods = l[1]
        self.dpp = mn.endswith('_dpp')
        self.sdwa = mn.endswith('_sdwa')
        rd = []; wr = []
        E = expand
        if mn.endswith(':') or mn.startswith('.') or mn.startswith(';'):
            self.kind = 'label'; self.ws = 0
        elif mn.startswith('v_mfma'):
            self.kind = 'mfma'
            wr = E(ops[0]); self.srcab = E(ops[1]) + E(ops[2]); self.srcc = E(ops[3])
            rd = self.srcab + self.srcc
            self.passes = 8 if '32x32' in mn else 4
        elif mn.startswith('v_'):
            base = re.sub(r'_(e32|e64|dpp|sdwa)$', '', mn)
            self.kind = 'trans' if base in TRANS else ('dot' if base.startswith('v_dot') else 'valu')
            if base.startswith('v_cmp'):
                wr = E(ops[0]); rd = sum((E(o) for o in ops[1:]), [])
                if base.startswith('v_cmpx'): wr += ['exec']
            elif base.startswith('v_permlane') and 'swap' in base:
                wr = E(ops[0]) + E(ops[1]); rd = list(wr)
            elif base in ('v_add_co_u32', 'v_sub_co_u32', 'v_addc_co_u32', 'v_subrev_co_u32'):
                wr = E(ops[0]) + E(ops[1]); rd = sum((E(o) for o in ops[2:]), [])
            elif base == 'v_nop':
                pass
            else:
                wr = E(ops[0]); rd = sum((E(o) for o in ops[1:]), [])
                if base in ('v_fmac_f32', 'v_dot2c_f32_bf16', 'v_pk_fmac_f16', 'v_writelane_b32') or self.dpp or self.sdwa:
                    rd += E(ops[0])
            rd += ['exec']
        elif mn.startswith('ds_'):
            self.kind = 'ds'
            if mn.startswith('ds_read') or mn.startswith('ds_bpermute') or mn.startswith('ds_swizzle') or mn.startswith('ds_permute'):
                wr = E(ops[0]); rd = sum((E(o) for o in ops[1:]), [])
            else:
                rd = sum((E(o) for o in ops), [])
            rd += ['exec']
        elif mn.startswith('buffer_') or mn.startswith('global_'):
            self.kind = 'vmem'
            lds = (' lds' in (' ' + mods)) or '_lds_' in mn
            if mn in ('buffer_wbl2', 'buffer_inv'):
                pass
            elif lds:
                rd = sum((E(o) for o in ops), []) + ['m0']
                self.kind = 'dma'
            elif '_load' in mn:
                wr = E(ops[0]); rd = sum((E(o) for o in ops[1:]), [])
            elif '_store' in mn or '_atomic' in mn:
                rd = sum((E(o) for o in ops), [])
                if mn.startswith('buffer_'): self.data = E(ops[0])
                else: self.data = E(ops[1])
                if '_atomic' in mn and 'sc0' in mods:
                    wr = E(ops[0])
            rd += ['exec']
        elif mn.startswith('s_load') or mn.startswith('s_memtime') or mn.startswith('s_memrealtime') or mn.startswith('s_buffer_load'):
            self.kind = 'smem'
            wr = E(ops[0]); rd = sum((E(o) for o in ops[1:]), [])
        elif mn == 's_nop':
            self.kind = 'nop'; self.ws = int(ops[0], 0) + 1
        elif mn in ('s_waitcnt', 's_barrier', 's_endpgm', 's_setprio', 's_sleep', 's_branch') or mn.startswith('s_cbranch'):
            self.kind = 'ctl'
            if mn.startswith('s_cbranch_scc'): rd = ['scc']
            if mn.startswith('s_cbranch_vcc'): rd = ['vcc']
            if mn.startswith('s_cbranch_exec'): rd = ['exec']
        elif mn.startswith('s_cmp') or mn.startswith('s_bitcmp'):
            self.kind = 'salu'; wr = ['scc']; rd = sum((E(o) for o in ops), [])
        elif mn.startswith('s_'):
            self.kind = 'salu'
            wr = E(ops[0]) + ['scc']; rd = sum((E(o) for o in ops[1:]), [])
            if mn.startswith('s_mov') or mn.startswith('s_getpc') or mn.startswith('s_getreg') or mn.startswith('s_mul') or mn.startswith('s_cselect'):
                wr = E(ops[0])
            if mn.startswith('s_cselect') or mn.startswith('s_addc') or mn.startswith('s_subb'): rd += ['scc']
            if 'saveexec' in mn: wr += ['exec']; rd += ['exec']
            if mn in ('s_addk_i32', 's_mulk_i32'): rd += E(ops[0])
        else:
            raise ValueError("unknown instruction: " + t)
        self.rd = set(rd); self.wr = set(wr)
    def isvalu(self):
        return self.kind in ('valu', 'trans', 'dot')

def insert_waits(ins):
    out = []
    vm = []
    lg = []
    def do_wait(nvm, nlg):
        nonlocal vm, lg
        parts = []
        if nvm is not None:
            assert nvm <= 63
            parts.append(f"vmcnt({nvm})"); vm = vm[len(vm) - nvm:] if nvm else []
        if nlg is not None:
            nlg = min(nlg, 15)
            parts.append(f"lgkmcnt({nlg})"); lg = lg[len(lg) - nlg:] if nlg else []
        out.append(Ins("s_waitcnt " + " ".join(parts)))
    for i in ins:
        if i.mn == 's_waitcnt':
            m = re.search(r'vmcnt\((\d+)\)', i.text)
            if m:
                n = int(m.group(1)); vm = vm[max(0, len(vm) - n):] if n else []
            m = re.search(r'lgkmcnt\((\d+)\)', i.text)
            if m:
                n = int(m.group(1))
                if n == 0: lg = []
                elif not any(o['smem'] for o in lg): lg = lg[max(0, len(lg) - n):]
            out.append(i); continue
        touch = i.rd | i.wr
        nvm = None; nlg = None
        for k, o in enumerate(vm):
            if (o['regs'] & touch) or (o['tok'] is not None and o['tok'] in i.needs):
                nvm = len(vm) - k - 1
        for k, o in enumerate(lg):
            if (o['regs'] & touch) or (o['tok'] is not None and o['tok'] in i.needs):
                nlg = len(lg) - k - 1
        if nlg is not None and any(o['smem'] for o in lg): nlg = 0
        if nvm is not None and nvm > 63: nvm = 63
        if nvm is not None or nlg is not None:
            do_wait(nvm, nlg)
        out.append(i)
        if i.kind in ('vmem', 'dma'):
            vm.append(dict(regs=set(i.wr), tok=i.tok))
            if len(vm) > 63:
                pass
        elif i.kind == 'ds':
            lg.append(dict(regs=set(i.wr), tok=i.tok, smem=False))
        elif i.kind == 'smem':
            lg.append(dict(regs=set(i.wr), tok=i.tok, smem=True))
    return out

def need_states(p, c):
    n = 0
    pw = p.wr
    if p.isvalu():
        vw = {r for r in pw if r[0] in 'va' and r not in ('vcc',)}
        sw = {r for r in pw if r[0] == 's' and r != 'scc' or r == 'vcc'}
        if c.kind == 'mfma' and (vw & c.rd): n = max(n, 2)
        if c.isvalu():
            if p.kind == 'trans' and c.kind != 'trans' and (vw & c.rd): n = max(n, 1)
            if p.kind == 'trans' and c.kind == 'trans' and (vw & c.rd): n = max(n, 1)
            if p.sdwa and (vw & (c.rd | c.wr)): n = max(n, 1)
            if (c.mn.startswith('v_readfirstlane') or c.mn.startswith('v_readlane')) and (vw & c.rd): n = max(n, 1)
            if c.mn.startswith('v_permlane') and (vw & c.rd): n = max(n, 2)
            if c.dpp and (vw & c.rd): n = max(n, 2)
            if sw & c.rd: n = max(n, 4 if (c.mn.startswith('v_readlane') or c.mn.startswith('v_writelane')) else 2)
            if 'exec' in pw and c.dpp: n = max(n, 5)
            if 'exec' in pw and (c.mn.startswith('v_readfirstlane') or c.mn.startswith('v_readlane') or c.mn.startswith('v_permlane')): n = max(n, 4)
        if p.kind == 'dot':
            if vw & (c.rd | c.wr):
                same = (c.mn == p.mn)
                if same and c.kind == 'dot':
                    ops_ab = set()
                    m = c.text.split(None, 1)[1].split(',')
                    for o in m[1:3]: ops_ab |= set(expand(o.strip().split()[0]))
                    if vw & ops_ab: n = max(n, 3)
                else:
                    n = max(n, 3)
        if c.kind in ('vmem', 'dma') and (sw & c.rd): n = max(n, 5)
        if c.kind == 'salu' and (sw & c.rd): n = max(n, 1)
        if 'exec' in pw and c.kind == 'mfma': n = max(n, 4)
    if p.kind == 'mfma':
        big = p.passes == 8
        D = pw
        if c.kind == 'mfma':
            if D & set(c.srcab): n = max(n, 12 if big else 8)
            if D & set(c.srcc):
                if set(c.srcc) == D and c.passes == p.passes: pass
                else: n = max(n, 10 if big else 6)
            elif D & c.wr:
                n = max(n, 10 if big else 6)
        elif c.isvalu() or c.kind in ('vmem', 'dma', 'ds'):
            if D & (c.rd | c.wr): n = max(n, 12 if big else 8)
            if c.isvalu() and (set(p.srcc) & c.wr): n = max(n, 7 if big else 3)
    if p.kind == 'salu' and 'm0' in pw and c.kind == 'dma': n = max(n, 1)
    if p.kind == 'vmem' and p.data and len(p.data) >= 3:
        if set(p.data) & c.wr: n = max(n, 2 if c.isvalu() else 1)
    if p.kind == 'ds' and p.mn.startswith('ds_write') :
        pass
    return n

def insert_nops(ins, verbose=False):
    out = []
    added = 0
    for c in ins:
        if c.kind == 'label':
            out.append(c); continue
        dist = 0; need = 0
        for p in reversed(out[-40:]):
            r = need_states(p, c)
            if r > dist: need = max(need, r - dist)
            dist += p.ws
            if dist >= 13: break
        while need > 0:
            k = min(need, 16)
            out.append(Ins(f"s_nop {k - 1}")); added += k
            if verbose: print("nop", k, "before", c.text)
            need -= k
        out.append(c)
    return out, added

def finalize(ins, verbose=False):
    ins = insert_waits(ins)
    ins, added = insert_nops(ins, verbose)
    return ins

def render(ins):
    o = []
    for i in ins:
        t = i.text if i.kind == 'label' else "  " + i.text
        if i.comment: t += "  ; " + i.comment
        o.append(t)
    return "\n".join(o)

class Block:
    def __init__(self):
        self.ins = []
    def __call__(self, text, tok=None, needs=(), comment=None):
        for line in text.split("\n"):
            if line.strip():
                self.ins.append(Ins(line, tok=tok, needs=needs, comment=comment))
        return self.ins[-1]
    def add(self, i):
        self.ins.append(i)

def kdesc(name, vgpr, agpr, sgpr=96):
    acc = (vgpr + 3) // 4 * 4
    nfv = acc + agpr if agpr else vgpr
    return f""".p2align 6
.amdhsa_kernel {name}
  .amdhsa_next_free_vgpr {nfv}
  .amdhsa_next_free_sgpr {sgpr}
  .amdhsa_accum_offset {acc}
  .amdhsa_group_segment_fixed_size 0
  .amdhsa_kernarg_size 96
  .amdhsa_user_sgpr_count 2
  .amdhsa_user_sgpr_kernarg_segment_ptr 1
  .amdhsa_system_sgpr_workgroup_id_x 1
  .amdhsa_float_denorm_mode_32 3
.end_amdhsa_kernel"""

def khead(name):
    return f".globl {name}\n.p2align 8\n.type {name},@function\n{name}:"

def srd(b, d, base, nbytes, off=0):
    if off:
        b(f"s_add_u32 s{d}, s{base}, {off}")
        b(f"s_addc_u32 s{d+1}, s{base+1}, 0")
    else:
        b(f"s_mov_b32 s{d}, s{base}")
        b(f"s_mov_b32 s{d+1}, s{base+1}")
    b(f"s_mov_b32 s{d+2}, {nbytes}")
    b(f"s_mov_b32 s{d+3}, 0x20000")
```

```python
from asmgen import *
from k3 import T_OFF
BLK = 20480
K1_LDS = 8 * BLK

def gen_k1(name="hid_kernel", opt=None):
    opt = opt or {}
    NMAIN = 192
    segs = []
    b = Block()
    b(f"s_cmp_ge_u32 s2, {NMAIN}")
    b(f"s_cbranch_scc1 {name}_end")
    b("s_load_dwordx2 s[4:5], s[0:1], 0")
    b("s_load_dwordx4 s[20:23], s[0:1], 24")
    b("s_load_dwordx2 s[6:7], s[0:1], 88")
    b("v_and_b32 v1, 63, v0")
    b("v_lshrrev_b32 v2, 6, v0")
    b("v_readfirstlane_b32 s28, v2")
    b("s_and_b32 s29, s2, 7")
    b("s_lshl_b32 s29, s29, 2")
    b("s_bfe_u32 s30, s2, 0x20003")
    b("s_or_b32 s29, s29, s30")
    b("s_lshr_b32 s30, s2, 5")
    b("s_lshl_b32 s31, s29, 1")
    b("s_add_u32 s31, s31, s28")
    b("s_mul_i32 s31, s31, 1152")
    b("s_mul_i32 s32, s30, 3")
    b("s_add_u32 s32, s32, s28")
    b("s_sub_u32 s32, s32, 2")
    b("s_cmp_ge_u32 s30, 3")
    b("s_cselect_b32 s33, 9, 0")
    b("s_sub_u32 s33, s32, s33")
    b(f"s_mul_i32 s33, s33, {32*1152}")
    b("s_cmp_lt_u32 s28, 2")
    b("s_cselect_b32 s34, s31, s33")
    b("s_movk_i32 s35, 1152")
    b("s_cselect_b32 s35, 73728, s35")
    b("s_lshl_b32 s36, s28, 12")
    b("v_lshrrev_b32 v3, 3, v1")
    b("v_mul_lo_u32 v3, v3, s35")
    b("v_lshrrev_b32 v4, 4, v1")
    b("v_and_b32 v5, 7, v1")
    b("v_xor_b32 v4, v4, v5")
    b("v_lshlrev_b32 v4, 4, v4")
    b("v_xor_b32 v5, 64, v4")
    b("s_lshl_b32 s37, s35, 3")
    b("v_add_u32 v8, v3, v4")
    b("v_add3_u32 v9, v3, v5, s37")
    b("s_lshl_b32 s37, s35, 4")
    b("v_add_u32 v10, s37, v8")
    b("v_add_u32 v11, s37, v9")
    b("s_cmp_eq_u32 s32, 9")
    b("s_cselect_b32 s38, 0xffffff00, -1")
    b("s_cmp_lt_u32 s28, 2")
    b("s_cselect_b32 s38, -1, s38")
    b("s_waitcnt lgkmcnt(0)")
    b("s_cmp_ge_u32 s30, 3")
    b("s_cselect_b32 s8, s22, s20")
    b("s_cselect_b32 s9, s23, s21")
    b("s_cmp_lt_u32 s28, 2")
    b("s_cselect_b32 s8, s4, s8")
    b("s_cselect_b32 s9, s5, s9")
    b(f"s_mov_b32 s10, {576*1152}")
    b(f"s_cselect_b32 s10, {2048*1152}, s10")
    b("s_mov_b32 s11, 0x20000")
    srd(b, 12, 6, 576 * 4096, T_OFF)
    def dma(B):
        if B == 8: b("s_add_u32 s34, s34, 1024")
        for i in range(4):
            b(f"s_add_u32 m0, s36, {(B % 8) * BLK + i * 1024 - (B % 8) * 128}")
            if i == 0: b("s_mov_b32 exec_lo, s38")
            off = f" offset:{B*128}" if B % 8 else ""
            b(f"buffer_load_dwordx4 v{8+i}, s[8:11], s34 offen{off} lds", tok=f"d{B}")
            if i == 0: b("s_mov_b32 exec_lo, -1")
    b("s_cmp_eq_u32 s28, 5")
    b(f"s_cbranch_scc1 {name}_l1")
    for B in range(8): dma(B)
    b("s_cmp_eq_u32 s38, -1")
    b(f"s_cbranch_scc1 {name}_l1")
    b("v_lshrrev_b32 v3, 3, v1")
    b(f"v_mul_u32_u24 v3, {BLK}, v3")
    b("v_and_b32 v4, 7, v1")
    b("v_lshl_add_u32 v3, v4, 4, v3")
    for r in range(4): b(f"v_mov_b32 v{12+r}, 0xbf803f80")
    b("ds_write_b128 v3, v[12:15] offset:8192", tok="cw")
    b(f"{name}_l1:")
    b("s_and_b32 s39, s28, 1")
    b("s_lshr_b32 s40, s28, 1")
    b("v_and_b32 v3, 31, v1")
    b("v_lshrrev_b32 v4, 5, v1")
    b("v_bfe_u32 v5, v1, 1, 3")
    b("v_xor_b32 v5, v5, v4")
    b("v_lshlrev_b32 v5, 4, v5")
    b("v_lshl_add_u32 v5, v3, 7, v5")
    vA, vB = 16, 20
    b("s_lshl_b32 s41, s39, 12")
    b("s_lshl_b32 s42, s40, 12")
    b("s_add_u32 s42, s42, 8192")
    for ks in range(4):
        b(f"v_xor_b32 v6, {32*ks}, v5")
        b(f"v_add_u32 v{vA+ks}, s41, v6")
        b(f"v_add_u32 v{vB+ks}, s42, v6")
    vS = 24
    for r in range(6): b(f"v_mov_b32 v{vS+r}, 0")
    b("s_mov_b32 s44, 0x3f803f80")
    vAcc = 32
    vFr = 48
    def reads(B):
        slot = B % 8
        st = B % 2
        if B in (3, 6):
            for ks in range(4):
                b(f"v_add_u32 v{vA+ks}, {3*BLK}, v{vA+ks}")
                b(f"v_add_u32 v{vB+ks}, {3*BLK}, v{vB+ks}")
        if B == 8:
            for ks in range(4):
                b(f"v_subrev_u32 v{vA+ks}, {6*BLK}, v{vA+ks}")
                b(f"v_subrev_u32 v{vB+ks}, {6*BLK}, v{vB+ks}")
        o = (slot % 3) * BLK
        for ks in range(4):
            r = vFr + 32 * st + 8 * ks
            b(f"ds_read_b128 v[{r}:{r+3}], v{vA+ks} offset:{o}")
            b(f"ds_read_b128 v[{r+4}:{r+7}], v{vB+ks} offset:{o}")
    def compute(B):
        st = B % 2
        for ks in range(4):
            r = vFr + 32 * st + 8 * ks
            c = "0" if (B == 0 and ks == 0) else f"v[{vAcc}:{vAcc+15}]"
            b(f"v_mfma_f32_32x32x16_bf16 v[{vAcc}:{vAcc+15}], v[{r}:{r+3}], v[{r+4}:{r+7}], {c}")
            for j in range(4):
                b(f"v_dot2c_f32_bf16 v{vS+(j&1)}, s44, v{r+j}")
                b(f"v_dot2c_f32_bf16 v{vS+2+(j&1)}, v{r+j}, v{r+j}")
                b(f"v_dot2c_f32_bf16 v{vS+4+(j&1)}, s44, v{r+4+j}")
    for B in range(9):
        b("s_barrier", needs=[f"d{B}", "cw"])
        reads(B)
        if B == 2:
            b("s_cmp_eq_u32 s28, 5")
            b(f"s_cbranch_scc1 {name}_l2")
            dma(8)
            b(f"{name}_l2:")
        if B > 0: compute(B - 1)
    compute(8)
    b(f"v_add_f32 v{vS}, v{vS}, v{vS+1}")
    b(f"v_add_f32 v{vS+2}, v{vS+2}, v{vS+3}")
    b(f"v_add_f32 v{vS+4}, v{vS+4}, v{vS+5}")
    for r in (0, 2, 4): b(f"v_mov_b32 v{vS+r+1}, v{vS+r}")
    for r in (0, 2, 4): b(f"v_permlane32_swap_b32 v{vS+r+1}, v{vS+r}")
    for r in (0, 2, 4): b(f"v_add_f32 v{vS+r}, v{vS+r}, v{vS+r+1}")
    b(f"v_mul_f32 v{vS}, 0xbae38e39, v{vS}")
    b(f"v_mul_f32 v{vS+2}, 0x3ae38e39, v{vS+2}")
    b(f"v_fma_f32 v{vS+2}, -v{vS}, v{vS}, v{vS+2}")
    b(f"v_max_f32 v{vS+2}, 0, v{vS+2}")
    b(f"v_add_f32 v{vS+2}, 0x3727c5ac, v{vS+2}")
    b(f"v_rsq_f32 v{vS+2}, v{vS+2}")
    b("s_lshl_b32 s45, s28, 8")
    b(f"s_add_u32 s45, s45, {BLK}")
    b("v_lshl_add_u32 v6, v3, 2, s45")
    b("v_lshl_add_u32 v7, v4, 4, s45")
    b(f"ds_write2_b32 v6, v{vS}, v{vS+2} offset0:0 offset1:32", tok="sw")
    vM, vR = vFr, vFr + 16
    for q in range(4):
        b(f"ds_read_b128 v[{vM+4*q}:{vM+4*q+3}], v7 offset:{32*q}")
        b(f"ds_read_b128 v[{vR+4*q}:{vR+4*q+3}], v7 offset:{128+32*q}")
    b("v_lshlrev_b32 v6, 12, v3")
    b("v_lshl_add_u32 v6, v4, 4, v6")
    b("s_mul_i32 s46, s30, 3")
    b("s_add_u32 s46, s46, s40")
    b("s_lshl_b32 s46, s46, 17")
    b("s_lshl_b32 s47, s29, 1")
    b("s_add_u32 s47, s47, s39")
    b("s_lshl_b32 s47, s47, 6")
    b("s_add_u32 s46, s46, s47")
    for i in range(16):
        b(f"v_fmac_f32 v{vAcc+i}, v{vM+i}, v{vS+4}")
    for i in range(16):
        b(f"v_mul_f32 v{vAcc+i}, v{vAcc+i}, v{vR+i}")
    vO = vFr + 32
    for i in range(8):
        b(f"v_cvt_pk_bf16_f32 v{vO+i}, v{vAcc+2*i}, v{vAcc+2*i+1}")
    b(f"buffer_store_dwordx4 v[{vO}:{vO+3}], v6, s[12:15], s46 offen")
    b(f"buffer_store_dwordx4 v[{vO+4}:{vO+7}], v6, s[12:15], s46 offen offset:32")
    ins = finalize(b.ins)
    txt = khead(name) + "\n" + render(ins) + f"\n{name}_end:\n  s_endpgm\n"
    return txt, kdesc(name, vFr + 64, 0, 64), K1_LDS, NMAIN
```

```python
from asmgen import *
from k3 import T_OFF, H_OFF, P_OFF, CS_OFF
import struct
def fl(x): return hex(struct.unpack('<I', struct.pack('<f', x))[0])
USTR = 72
ESTR = 64 * USTR + 64
K2_LDS = 8 * ESTR

def gen_k2(name="fft_kernel", opt=None):
    opt = opt or {}
    b = Block()
    NMAIN = 72
    b(f"s_cmp_ge_u32 s2, {NMAIN + 144}")
    b(f"s_cbranch_scc1 {name}_end")
    b(f"s_cmp_ge_u32 s2, {NMAIN}")
    b(f"s_cbranch_scc1 {name}_side")
    b("s_load_dwordx2 s[4:5], s[0:1], 0")
    b("s_load_dwordx2 s[6:7], s[0:1], 88")
    b("v_and_b32 v1, 63, v0")
    b("v_lshrrev_b32 v2, 6, v0")
    b("v_readfirstlane_b32 s28, v2")
    b("s_and_b32 s29, s2, 7")
    b("s_mul_i32 s29, s29, 9")
    b("s_lshr_b32 s30, s2, 3")
    b("s_add_u32 s29, s29, s30")
    b("s_lshl_b32 s30, s29, 3")
    b("s_add_u32 s30, s30, s28")
    b("s_sub_u32 s31, 576, s30")
    b("s_min_u32 s31, s31, s30")
    b("s_cmp_gt_u32 s30, 288")
    b("s_cselect_b32 s32, 0x80008000, 0")
    b("s_lshl_b32 s33, s31, 12")
    b(f"s_add_u32 s34, s33, {288*4096}")
    b("s_cmp_eq_u32 s31, 0")
    b(f"s_cselect_b32 s34, {576*4096}, s34")
    b("v_and_b32 v3, 31, v1")
    b("v_lshrrev_b32 v4, 5, v1")
    b("v_lshlrev_b32 v5, 6, v3")
    b("v_lshl_add_u32 v5, v4, 4, v5")
    b("s_waitcnt lgkmcnt(0)")
    srd(b, 8, 6, 576 * 4096, T_OFF)
    srd(b, 12, 4, 2048 * 1152)
    srd(b, 16, 6, 0x240000, H_OFF)
    vX = 16
    for part in range(2):
        for p in range(2):
            for ks in range(2):
                r = vX + 16 * part + 8 * p + 4 * ks
                o = p * 2048 + ks * 32
                off = f" offset:{o}" if o else ""
                b(f"buffer_load_dwordx4 v[{r}:{r+3}], v5, s[8:11], s{33+part} offen{off}")
    vXr = 48
    b("s_mov_b32 s35, 73728")
    b("v_mul_lo_u32 v6, v3, s35")
    b("v_mul_u32_u24 v7, 1152, v4")
    b("v_add_u32 v6, v6, v7")
    b(f"s_mul_i32 s35, s28, {8*1152}")
    b("s_lshl_b32 s36, s29, 4")
    b("s_add_u32 s35, s35, s36")
    for k in range(4):
        if k == 1: off = " offset:2304"
        elif k == 3: off = " offset:2304"
        else: off = ""
        if k == 2: b("s_add_u32 s35, s35, 4608")
        b(f"buffer_load_dwordx4 v[{vXr+4*k}:{vXr+4*k+3}], v6, s[12:15], s35 offen{off}")
    vC = 64; vS = 72; vN = 80
    vTC = 88; vTS = 120
    vF = 152
    vA = 216
    vCv = 8; vSv = 9
    b("v_cvt_f32_u32 v10, v3")
    b("v_cvt_f32_u32 v11, v4")
    b("v_mul_f32 v11, 4.0, v11")
    b(f"v_mul_f32 v12, {fl(1/32)}, v10")
    b("v_mul_f32 v13, v12, v11")
    idx = lambda i: 8 * (i // 4) + i % 4
    for i in range(16):
        if i == 0: b(f"v_mov_b32 v{vA}, v13")
        else: b(f"v_fmamk_f32 v{vA+i}, v12, {fl(float(idx(i)))}, v13")
    for i in range(16):
        b(f"v_cos_f32 v{vA+16+i}, v{vA+i}")
        b(f"v_sin_f32 v{vA+i}, v{vA+i}")
    for i in range(8):
        b(f"v_cvt_pk_bf16_f32 v{vC+i}, v{vA+16+2*i}, v{vA+17+2*i}")
        b(f"v_cvt_pk_bf16_f32 v{vS+i}, v{vA+2*i}, v{vA+1+2*i}")
    for i in range(8):
        b(f"v_xor_b32 v{vN+i}, 0x80008000, v{vS+i}")
    b(f"v_mul_f32 v12, {fl(1/64)}, v10")
    b(f"v_cos_f32 v{vCv}, v12")
    b(f"v_sin_f32 v{vSv}, v12")
    def twid(bb):
        b(f"v_add_f32 v12, {fl(32.0*bb)}, v10")
        b(f"v_mul_f32 v12, {fl(1/2048)}, v12")
        b("v_mul_f32 v13, v12, v11")
        for i in range(16):
            if i == 0: b(f"v_mov_b32 v{vTS+16*bb}, v13")
            else: b(f"v_fmamk_f32 v{vTS+16*bb+i}, v12, {fl(float(idx(i)))}, v13")
        for i in range(16):
            b(f"v_cos_f32 v{vTC+16*bb+i}, v{vTS+16*bb+i}")
            b(f"v_sin_f32 v{vTS+16*bb+i}, v{vTS+16*bb+i}")
    twid(0); twid(1)
    b(f"v_mul_u32_u24 v14, {USTR}, v3")
    b("v_lshl_add_u32 v14, v4, 3, v14")
    b(f"s_mul_i32 s36, s28, {ESTR}")
    b("v_add_u32 v14, s36, v14")
    b("v_bfe_u32 v12, v1, 2, 2")
    b(f"v_mul_u32_u24 v15, {ESTR}, v12")
    b("v_and_b32 v12, 3, v1")
    b("v_lshl_add_u32 v15, v12, 3, v15")
    b("v_bfe_u32 v12, v1, 4, 1")
    b("v_lshl_add_u32 v15, v12, 5, v15")
    b(f"v_mul_u32_u24 v12, {USTR}, v4")
    b("v_add_u32 v15, v15, v12")
    b(f"s_mul_i32 s36, s28, {8*USTR}")
    b("v_add_u32 v15, s36, v15")
    b("v_mul_u32_u24 v7, 36864, v4")
    b("v_lshl_add_u32 v7, v3, 4, v7")
    b(f"s_mul_i32 s37, s28, {8*36864}")
    b("s_lshl_b32 s38, s29, 9")
    b("s_add_u32 s37, s37, s38")
    R = lambda r: f"v[{r}:{r+3}]"
    A16 = lambda r: f"v[{r}:{r+15}]"
    Xr = lambda p, ks: vX + 8 * p + 4 * ks
    Xi = lambda p, ks: vX + 16 + 8 * p + 4 * ks
    for p in range(2):
        Fr, Fi = vF + 32 * p, vF + 32 * p + 16
        for ks in range(2):
            b(f"v_mfma_f32_32x32x16_bf16 {A16(Fr)}, {R(Xr(p,ks))}, {R(vC+4*ks)}, {'0' if ks == 0 else A16(Fr)}")
            b(f"v_mfma_f32_32x32x16_bf16 {A16(Fi)}, {R(Xr(p,ks))}, {R(vN+4*ks)}, {'0' if ks == 0 else A16(Fi)}")
    for i in range(16):
        b(f"v_xor_b32 v{vX+16+i}, s32, v{vX+16+i}")
    for p in (1, 0):
        Fr, Fi = vF + 32 * p, vF + 32 * p + 16
        for ks in range(2):
            b(f"v_mfma_f32_32x32x16_bf16 {A16(Fr)}, {R(Xi(p,ks))}, {R(vS+4*ks)}, {A16(Fr)}")
            b(f"v_mfma_f32_32x32x16_bf16 {A16(Fi)}, {R(Xi(p,ks))}, {R(vC+4*ks)}, {A16(Fi)}")
    F0r, F0i, F1r, F1i = vF, vF + 16, vF + 32, vF + 48
    G0r, G0i = vA, vA + 16
    for i in range(16):
        b(f"v_fma_f32 v{G0r+i}, v{F1r+i}, v{vCv}, v{F0r+i}")
        b(f"v_fma_f32 v{G0i+i}, v{F1i+i}, v{vCv}, v{F0i+i}")
    for i in range(16):
        b(f"v_fmac_f32 v{G0r+i}, v{F1i+i}, v{vSv}")
        b(f"v_fma_f32 v{G0i+i}, -v{F1r+i}, v{vSv}, v{G0i+i}")
    for i in range(16):
        b(f"v_fma_f32 v{F0r+i}, v{F0r+i}, 2.0, -v{G0r+i}")
        b(f"v_fma_f32 v{F0i+i}, v{F0i+i}, 2.0, -v{G0i+i}")
    D2 = [F1r, F1i]
    for bb in range(2):
        Gr, Gi = (G0r, G0i) if bb == 0 else (F0r, F0i)
        tc, ts = vTC + 16 * bb, vTS + 16 * bb
        Zr, Zi = vX + 16 * bb, vX + 16 * bb + 8
        tmp = 248
        for i0 in range(0, 16, 4):
            for i in range(i0, i0 + 4):
                b(f"v_mul_f32 v{tmp+i-i0}, v{Gr+i}, v{tc+i}")
                b(f"v_mul_f32 v{tmp+4+i-i0}, v{Gi+i}, v{tc+i}")
            for i in range(i0, i0 + 4):
                b(f"v_fmac_f32 v{tmp+i-i0}, v{Gi+i}, v{ts+i}")
                b(f"v_fma_f32 v{tmp+4+i-i0}, -v{Gr+i}, v{ts+i}, v{tmp+4+i-i0}")
            for h in range(2):
                b(f"v_cvt_pk_bf16_f32 v{Zr+i0//2+h}, v{tmp+2*h}, v{tmp+2*h+1}")
                b(f"v_cvt_pk_bf16_f32 v{Zi+i0//2+h}, v{tmp+4+2*h}, v{tmp+4+2*h+1}")
        for ks in range(2):
            b(f"v_mfma_f32_32x32x16_bf16 {A16(D2[bb])}, {R(vC+4*ks)}, {R(Zr+4*ks)}, {'0' if ks == 0 else A16(D2[bb])}")
            b(f"v_mfma_f32_32x32x16_bf16 {A16(D2[bb])}, {R(vS+4*ks)}, {R(Zi+4*ks)}, {A16(D2[bb])}")
    for bb in range(2):
        for q in range(4):
            t = vTC + 8 * bb + 2 * q
            b(f"v_cvt_pk_bf16_f32 v{t}, v{D2[bb]+4*q}, v{D2[bb]+4*q+1}")
            b(f"v_cvt_pk_bf16_f32 v{t+1}, v{D2[bb]+4*q+2}, v{D2[bb]+4*q+3}")
            b(f"ds_write_b64 v14, v[{t}:{t+1}] offset:{bb*32*USTR + q*16}", tok="yw")
    b("s_barrier", needs=["yw"])
    vY = vTS
    for k in range(4):
        for rd in range(2):
            b(f"ds_read_b64_tr_b16 v[{vY+4*k+2*rd}:{vY+4*k+2*rd+1}], v15 offset:{rd*4*ESTR + 2*k*USTR}")
    b("s_mov_b32 s40, 0x00003f80")
    b("s_mov_b32 s41, 0x3f800000")
    for k in range(4):
        t = vA + 8 * k
        for r in range(4):
            b(f"v_lshlrev_b32 v{t+2*r}, 16, v{vXr+4*k+r}")
            b(f"v_and_b32 v{t+2*r+1}, 0xffff0000, v{vXr+4*k+r}")
    for k in range(4):
        t = vA + 8 * k
        for r in range(4):
            b(f"v_dot2c_f32_bf16 v{t+2*r}, s40, v{vY+4*k+r}")
            b(f"v_dot2c_f32_bf16 v{t+2*r+1}, s41, v{vY+4*k+r}")
    for k in range(4):
        t = vA + 8 * k
        for r in range(4):
            b(f"v_cvt_pk_bf16_f32 v{vXr+4*k+r}, v{t+2*r}, v{t+2*r+1}")
        b(f"buffer_store_dwordx4 v[{vXr+4*k}:{vXr+4*k+3}], v7, s[16:19], s37 offen")
        if k < 3: b(f"s_add_u32 s37, s37, {2*36864}")
    b("s_endpgm")
    main = finalize(b.ins)
    b = Block()
    b("s_load_dwordx4 s[4:7], s[0:1], 48")
    b("s_load_dwordx2 s[20:21], s[0:1], 88")
    b("v_and_b32 v1, 63, v0")
    b("v_lshrrev_b32 v2, 6, v0")
    b("v_readfirstlane_b32 s28, v2")
    b(f"s_sub_u32 s29, s2, {NMAIN}")
    b("s_lshr_b32 s30, s29, 3")
    b("s_cmp_ge_u32 s30, 9")
    b("s_cselect_b32 s31, 1, 0")
    b("s_cselect_b32 s32, 9, 0")
    b("s_sub_u32 s30, s30, s32")
    b("s_and_b32 s29, s29, 7")
    b("s_mul_i32 s29, s29, 9")
    b("s_add_u32 s29, s29, s30")
    b("v_lshrrev_b32 v3, 3, v1")
    b("v_mul_u32_u24 v3, 9216, v3")
    b("v_and_b32 v4, 7, v1")
    b("v_lshl_add_u32 v3, v4, 4, v3")
    b(f"s_mul_i32 s33, s28, {72*9216}")
    b("s_lshl_b32 s34, s29, 7")
    b("s_add_u32 s33, s33, s34")
    b("s_waitcnt lgkmcnt(0)")
    b("s_cmp_eq_u32 s31, 0")
    b("s_cselect_b32 s8, s4, s6")
    b("s_cselect_b32 s9, s5, s7")
    b(f"s_mov_b32 s10, {576*9216}")
    b("s_mov_b32 s11, 0x20000")
    srd(b, 12, 20, 4608 * 8, CS_OFF)
    for i in range(9):
        b(f"buffer_load_dwordx4 v[{16+4*i}:{19+4*i}], v3, s[8:11], s33 offen")
        if i < 8: b(f"s_add_u32 s33, s33, {8*9216}")
    b("s_mov_b32 s40, 0x00003f80")
    b("s_mov_b32 s41, 0x3f800000")
    b("v_lshlrev_b32 v5, 5, v0")
    for r in range(4):
        b(f"v_lshlrev_b32 v{8+2*r}, 16, v{16+r}")
        b(f"v_and_b32 v{9+2*r}, 0xffff0000, v{16+r}")
    for i in range(1, 9):
        for r in range(4):
            b(f"v_dot2c_f32_bf16 v{8+2*r}, s40, v{16+4*i+r}")
            b(f"v_dot2c_f32_bf16 v{9+2*r}, s41, v{16+4*i+r}")
    b("ds_write_b128 v5, v[8:11]", tok="w")
    b("ds_write_b128 v5, v[12:15] offset:16", tok="w")
    b("s_barrier", needs=["w"])
    b("s_cmp_lg_u32 s28, 0")
    b(f"s_cbranch_scc1 {name}_end")
    b("v_lshlrev_b32 v6, 2, v1")
    for i in range(32):
        b(f"ds_read2st64_b32 v[{16+2*i}:{17+2*i}], v6 offset0:{2*i} offset1:{2*i+1}")
    for st in (32, 16, 8, 4, 2, 1):
        for i in range(st):
            b(f"v_add_f32 v{16+i}, v{16+i}, v{16+st+i}")
    b("v_cvt_pk_bf16_f32 v8, v16, v16")
    b("v_and_b32 v9, 0xffff0000, v8")
    b("v_sub_f32 v9, v16, v9")
    b("v_cvt_pk_bf16_f32 v8, v16, v9")
    b("v_lshlrev_b32 v6, 3, v1")
    b("s_lshl_b32 s33, s29, 9")
    b("s_lshl_b32 s34, s31, 2")
    b("s_add_u32 s33, s33, s34")
    b("buffer_store_dword v8, v6, s[12:15], s33 offen")
    side = finalize(b.ins)
    txt = khead(name) + "\n" + render(main) + f"\n{name}_side:\n" + render(side) + f"\n{name}_end:\n  s_endpgm\n"
    return txt, kdesc(name, 256, 0, 48), K2_LDS, NMAIN + 144
```

```python
from asmgen import *

T_OFF = 0
H_OFF = 0x240000
X_OFF = 0x480000
CS_OFF = 0x6C0000
ST_OFF = 0x700000
P_OFF = 0x800000
PSZ = 0x240000
SLOT = 36864
K3_LDS = 4 * SLOT

def gen_k3(name="ffn_kernel", stflag="", stamps=False, opt=None):
    opt = opt or {}
    b = Block()
    NV = 20
    vH = 0 + 16
    vACT = vH + 4 * NV
    vGa = vACT + 72
    vGb = vGa + 16
    vU = vGb + 16
    vT = vU + 16
    vBm0 = vT + 16
    vBm1 = vBm0 + 4
    vDO = vBm1 + 4
    vTmp = vDO + 9
    vLane = 1; vR1 = 2
    vR2 = 6
    vC1 = 10; vVar = 11; vSt = 12; vS0 = 13; vQ0 = 14; vX = 15
    aH = 0
    aF = 64
    aCS = 96
    NA = 116
    def hfrag(kk, first=False):
        if kk < NV: return f"v[{vH+4*kk}:{vH+4*kk+3}]"
        if first: return f"v[{vACT+4*(kk-NV)}:{vACT+4*(kk-NV)+3}]"
        return f"a[{aH+4*(kk-NV)}:{aH+4*(kk-NV)+3}]"
    def hreg0(kk):
        return vH + 4 * kk if kk < NV else vACT + 4 * (kk - NV)
    b("s_cmp_ge_u32 s2, 256")
    b(f"s_cbranch_scc1 {name}_end")
    b("s_load_dwordx4 s[4:7], s[0:1], 48")
    b("s_load_dwordx2 s[36:37], s[0:1], 64")
    b("s_load_dwordx2 s[38:39], s[0:1], 88")
    if stamps: b("s_memtime s[48:49]")
    b(f"v_and_b32 v{vLane}, 63, v0")
    b(f"v_lshrrev_b32 v{vX}, 6, v0")
    b(f"v_readfirstlane_b32 s28, v{vX}")
    lb = opt.get('lb', 1)
    nx = 4 - lb
    if nx >= 3:
        b("s_and_b32 s30, s2, 7")
        b("s_mov_b32 s29, 0")
    else:
        b(f"s_and_b32 s30, s2, {(1 << nx) - 1}")
        b(f"s_bfe_u32 s29, s2, {((3 - nx) << 16) | nx}")
        b(f"s_lshl_b32 s29, s29, {5 - lb}")
    b(f"s_lshl_b32 s30, s30, {lb}")
    b(f"s_bfe_u32 s31, s2, {(lb << 16) | 3}")
    b("s_or_b32 s30, s30, s31")
    b(f"s_lshr_b32 s31, s2, {3 + lb}")
    b("s_add_u32 s29, s29, s31")
    b("s_mul_i32 s31, s30, 576")
    b("s_mul_i32 s32, s28, 9216")
    b("s_mul_i32 s33, s30, 331776")
    b("s_lshl_b32 s34, s29, 2")
    b("s_add_u32 s34, s34, s28")
    b("s_mul_i32 s34, s34, 36864")
    b(f"s_mul_i32 s35, s30, {PSZ}")
    b("s_add_u32 s35, s35, s34")
    b(f"v_lshrrev_b32 v{vTmp}, 2, v{vLane}")
    b(f"v_mul_u32_u24 v{vTmp}, 9216, v{vTmp}")
    b(f"v_and_b32 v{vTmp+1}, 3, v{vLane}")
    b(f"v_lshl_add_u32 v{vTmp}, v{vTmp+1}, 4, v{vTmp}")
    b(f"s_mul_i32 s40, s28, {9*16*9216}")
    b(f"v_add_u32 v{vDO}, s40, v{vTmp}")
    for i in range(1, 9):
        b(f"v_add_u32 v{vDO+i}, {i*16*9216 - (i%4)*1024}, v{vDO}")
    b(f"v_lshlrev_b32 v{vSt}, 4, v{vLane}")
    b("s_waitcnt lgkmcnt(0)")
    srd(b, 8, 4, 576 * 9216)
    srd(b, 12, 6, 576 * 9216)
    srd(b, 16, 36, 4608 * 1152)
    srd(b, 20, 38, P_OFF)
    srd(b, 24, 38, 16 * PSZ, P_OFF)

    NST = 27
    def dma_list(s):
        l = []
        slot = (s % 4) * SLOT
        if s < 18:
            sr = 8 if s % 2 == 0 else 12
            l.append([Ins(f"s_add_u32 s41, s31, {(s // 2) * 64}")])
        else:
            sr = 16
            l.append([Ins(f"s_add_u32 s41, s33, {(s - 18) * 128}")])
        for i in range(9):
            it = []
            if i % 4 == 0:
                it.append(Ins(f"s_add_u32 m0, s32, {slot + i * 1024}"))
            off = f" offset:{(i%4)*1024}" if i % 4 else ""
            it.append(Ins(f"buffer_load_dwordx4 v{vDO+i}, s[{sr}:{sr+3}], s41 offen{off} lds", tok=f"dma{s}"))
            l.append(it)
        l[1] = l[0] + l[1]
        return l[1:]
    for it in dma_list(0):
        for i in it: b.add(i)
    b(f"s_add_u32 s42, s34, {H_OFF}")
    for kk in range(36):
        if kk and kk % 4 == 0: b("s_add_u32 s42, s42, 4096")
        off = f" offset:{(kk%4)*1024}" if kk % 4 else ""
        b(f"buffer_load_dwordx4 {hfrag(kk, True)}, v{vSt}, s[20:23], s42 offen{off}")
    b(f"v_and_b32 v{vTmp}, 31, v{vLane}")
    b(f"v_lshlrev_b32 v{vTmp}, 3, v{vTmp}")
    b("s_lshl_b32 s42, s31, 2")
    b(f"s_add_u32 s42, s42, {CS_OFF}")
    for i in range(9):
        off = f" offset:{i*256}" if i else ""
        b(f"buffer_load_dwordx2 a[{aCS+2*i}:{aCS+2*i+1}], v{vTmp}, s[20:23], s42 offen{off}")
    for it in dma_list(1):
        for i in it: b.add(i)
    b(f"v_and_b32 v{vTmp}, 3, v{vLane}")
    b(f"v_lshlrev_b32 v{vTmp}, 3, v{vTmp}")
    b(f"v_bfe_u32 v{vTmp+1}, v{vLane}, 4, 1")
    b(f"v_lshl_add_u32 v{vTmp}, v{vTmp+1}, 5, v{vTmp}")
    b(f"v_bfe_u32 v{vTmp+1}, v{vLane}, 2, 2")
    b(f"v_lshl_add_u32 v{vTmp}, v{vTmp+1}, 6, v{vTmp}")
    b(f"v_lshrrev_b32 v{vTmp+1}, 5, v{vLane}")
    b(f"v_lshl_add_u32 v{vR1}, v{vTmp+1}, 9, v{vTmp}")
    b(f"v_lshl_add_u32 v{vR2}, v{vTmp+1}, 8, v{vTmp}")
    for s in range(1, 4):
        b(f"v_add_u32 v{vR1+s}, {s*SLOT}, v{vR1}")
        b(f"v_add_u32 v{vR2+s}, {s*SLOT}, v{vR2}")
    for r in (1, 2, 3): b(f"v_mov_b32 v{vBm0+r}, 0")
    for r in (0, 2, 3): b(f"v_mov_b32 v{vBm1+r}, 0")
    b(f"v_accvgpr_write_b32 a{aCS+18}, 0")
    b(f"v_accvgpr_write_b32 a{aCS+19}, 0")
    for r in range(4): b(f"v_mov_b32 v{vT+r}, 0")
    b("s_mov_b32 s44, 0x3f803f80")
    b("s_mov_b32 s46, 0")
    b("s_mov_b32 s47, -1")

    M = []
    def acc_str(r): return f"v[{r}:{r+15}]"
    stage_start = {}
    last_of = {}
    for s in range(18):
        i = s // 2
        acc = (vGa if i % 2 == 0 else vGb) if s % 2 == 0 else vU
        stage_start[s] = len(M)
        for kk in range(36):
            M.append(dict(acc=acc, rd=(vR1 + s % 4, kk * 1024, kk * 1024 + 256), b=hfrag(kk, s == 0), c0=(kk == 0), stage=s))
            if s == 1 and kk == 11:
                M.append(dict(acc=vGa, rd=None, a=f"a[{aCS}:{aCS+3}]", b=f"v[{vBm0}:{vBm0+3}]", c0=False, stage=s))
                last_of[0] = len(M) - 1
        if s > 0:
            bm = vBm0 if s % 2 == 0 else vBm1
            M.append(dict(acc=acc, rd=None, a=f"a[{aCS+2*i}:{aCS+2*i+3}]", b=f"v[{bm}:{bm+3}]", c0=False, stage=s))
            last_of[s] = len(M) - 1
    chain_last = {}
    for s in range(18, NST):
        stage_start[s] = len(M)
        for ct in range(2):
            tile = 2 * (s - 18) + ct
            acc = vGb if tile % 2 == 0 else vGa
            for kk in range(18):
                M.append(dict(acc=acc, rd=(vR2 + s % 4, kk * 2048 + ct * 512, kk * 2048 + 1024 + ct * 512),
                              b=f"v[{vACT+4*kk}:{vACT+4*kk+3}]", c0=(kk == 0), stage=s))
            chain_last[tile] = len(M) - 1
    NM = len(M)
    gaps = [[] for _ in range(NM + 1)]
    cost = [0] * (NM + 1)
    def put(g, inss, c=None):
        g = min(g, NM - 1)
        if not isinstance(inss, list): inss = [inss]
        gaps[g + 1].extend(inss)
        for i in inss:
            cost[g + 1] += (8 if i.kind == 'trans' else 4) if c is None else c
    R = [g for g in range(NM) if M[g]['rd'] is not None]
    LA = opt.get('la', 6)
    BARL = opt.get('barl', 4)
    bar_pos = {s: stage_start[s] - BARL for s in range(1, NST)}
    bar_pos[0] = -1
    for s in range(NST):
        needs = [f"dma{s}"] + ([f"rd{g}" for g in R if M[g]['stage'] == s - 1] if s else [])
        if stamps and s >= 1:
            put(bar_pos[s] - 2, Ins(f"s_memtime s[{48+2*s}:{49+2*s}]", tok=f"st{s}"))
            needs = needs + [f"st{s}"]
        if not opt.get('nobar') or s == 0:
            put(bar_pos[s], [Ins("s_barrier", needs=needs)], 8)
        else:
            put(bar_pos[s], [Ins("s_nop 0", needs=needs)], 8)
    nrd = {}
    for n, g in enumerate(R):
        buf = aF + 4 * (n % 8)
        M[g]['a'] = f"a[{buf}:{buf+3}]"
        base, o0, o1 = M[g]['rd']
        p = R[n - LA] if n >= LA else -1
        p = max(p, bar_pos[M[g]['stage']])
        while nrd.get(p, 0) >= (2 if p not in bar_pos.values() else (1 if p >= 0 else 4)): p += 1
        assert p < g, (g, p)
        if n >= 8: assert p >= R[n - 8], (g, p)
        nrd[p] = nrd.get(p, 0) + 1
        M[g]['rp'] = p
        put(p, [Ins(f"ds_read_b64_tr_b16 a[{buf}:{buf+1}], v{base} offset:{o0}", tok=f"rd{g}"),
                Ins(f"ds_read_b64_tr_b16 a[{buf+2}:{buf+3}], v{base} offset:{o1}", tok=f"rd{g}")])
    DSTEP = opt.get('dstep', 3)
    for s in range(2, NST):
        items = dma_list(s)
        if s == 2: g0 = 2
        elif s == 3: g0 = 20
        else: g0 = bar_pos[s - 3] + 5
        step = 2 if s <= 3 else DSTEP
        if s == 18:
            pre = []
            pre.append(Ins(f"v_bfe_u32 v{vTmp+5}, v{vLane}, 2, 3"))
            pre.append(Ins(f"v_mul_u32_u24 v{vTmp+5}, 1152, v{vTmp+5}"))
            pre.append(Ins(f"v_and_b32 v{vTmp+6}, 3, v{vLane}"))
            pre.append(Ins(f"v_lshl_add_u32 v{vTmp+5}, v{vTmp+6}, 4, v{vTmp+5}"))
            pre.append(Ins(f"v_lshrrev_b32 v{vTmp+6}, 5, v{vLane}"))
            pre.append(Ins(f"v_lshl_add_u32 v{vTmp+5}, v{vTmp+6}, 6, v{vTmp+5}"))
            pre.append(Ins(f"s_mul_i32 s40, s28, {9*8*1152}"))
            pre.append(Ins(f"v_add_u32 v{vDO}, s40, v{vTmp+5}"))
            for i in range(1, 9):
                pre.append(Ins(f"v_add_u32 v{vDO+i}, {i*8*1152 - (i%4)*1024}, v{vDO}"))
            for k, i in enumerate(pre): put(g0 - 9 + k // 2, i)
        for k, it in enumerate(items):
            if opt.get('nodma') and s >= 4: continue
            put(g0 + k * step - 1, it[:-1])
            put(g0 + k * step, it[-1:])
    def spread(inss, g_lo, g_hi):
        n = len(inss)
        tot = sum(8 if i.kind == 'trans' else 4 for i in inss)
        base = sum(cost[g + 1] for g in range(g_lo, g_hi + 1))
        level = (tot + base) / (g_hi - g_lo + 1)
        g = g_lo; carry = 0.0
        for i in inss:
            c = 8 if i.kind == 'trans' else 4
            while g < g_hi and cost[g + 1] + c > level + carry + 2:
                carry += level - cost[g + 1]
                g += 1
            put(g, i)
    for kk in range(36):
        r = hreg0(kk)
        l = []
        for j in range(4):
            l.append(Ins(f"v_dot2c_f32_bf16 v{vT + (j & 1)}, s44, v{r+j}"))
            l.append(Ins(f"v_dot2c_f32_bf16 v{vT + 2 + (j & 1)}, v{r+j}, v{r+j}"))
        if kk >= NV:
            for j in range(4): l.append(Ins(f"v_accvgpr_write_b32 a{aH + 4*(kk-NV) + j}, v{r+j}"))
        put(kk, l)
    fin = []
    t0, t1, t2, t3 = vTmp, vTmp + 1, vTmp + 2, vTmp + 3
    fin += [Ins(f"v_add_f32 v{vS0}, v{vT}, v{vT+1}"), Ins(f"v_add_f32 v{vQ0}, v{vT+2}, v{vT+3}"),
            Ins(f"v_mov_b32 v{t0}, v{vS0}"), Ins(f"v_mov_b32 v{t1}, v{vQ0}"),
            Ins(f"v_permlane32_swap_b32 v{t0}, v{vS0}"), Ins(f"v_permlane32_swap_b32 v{t1}, v{vQ0}"),
            Ins(f"v_add_f32 v{vS0}, v{t0}, v{vS0}"), Ins(f"v_add_f32 v{vQ0}, v{t1}, v{vQ0}"),
            Ins(f"v_mul_f32 v{vS0}, 0xbae38e39, v{vS0}"),
            Ins(f"v_mul_f32 v{vQ0}, 0x3ae38e39, v{vQ0}"),
            Ins(f"v_cvt_pk_bf16_f32 v{t0}, v{vS0}, v{vS0}"),
            Ins(f"v_fma_f32 v{vVar}, -v{vS0}, v{vS0}, v{vQ0}"),
            Ins(f"v_and_b32 v{t1}, 0xffff0000, v{t0}"),
            Ins(f"v_max_f32 v{vVar}, 0, v{vVar}"),
            Ins(f"v_sub_f32 v{t1}, v{vS0}, v{t1}"),
            Ins(f"v_add_f32 v{vVar}, 0x3727c5ac, v{vVar}"),
            Ins(f"v_cvt_pk_bf16_f32 v{t1}, v{t1}, v{t1}"),
            Ins(f"v_rsq_f32 v{vC1}, v{vVar}"),
            Ins(f"v_cndmask_b32 v{vBm0}, v{t0}, v{t1}, s[46:47]"),
            Ins(f"v_mul_f32 v{vC1}, 0xbfb8aa3b, v{vC1}"),
            Ins(f"v_mov_b32 v{vBm1+1}, v{vBm0}")]
    spread(fin, stage_start[1], stage_start[1] + 9)
    def w1(i, els):
        G = vGa if i % 2 == 0 else vGb
        l = []
        for e0 in range(0, len(els), 4):
            grp = els[e0:e0 + 4]
            for e in grp: l.append(Ins(f"v_mul_f32 v{vT+e}, v{G+e}, v{vC1}"))
            for e in grp: l.append(Ins(f"v_exp_f32 v{vT+e}, v{vT+e}"))
            for e in grp: l.append(Ins(f"v_fma_f32 v{vT+e}, v{vT+e}, v{vVar}, v{vVar}"))
            for e in grp: l.append(Ins(f"v_rcp_f32 v{vT+e}, v{vT+e}"))
        return l
    def w2(i):
        G = vGa if i % 2 == 0 else vGb
        l = []
        for e0 in range(0, 16, 4):
            grp = range(e0, e0 + 4)
            for e in grp: l.append(Ins(f"v_mul_f32 v{G+e}, v{G+e}, v{vU+e}"))
            for e in grp: l.append(Ins(f"v_mul_f32 v{G+e}, v{G+e}, v{vT+e}"))
            for e in (e0, e0 + 2): l.append(Ins(f"v_cvt_pk_bf16_f32 v{vACT + 8*i + e//2}, v{G+e}, v{G+e+1}"))
        return l
    NA1 = opt.get('na1', 12)
    for i in range(9):
        if opt.get('novalu'): break
        sG, sU = 2 * i, 2 * i + 1
        nxt = stage_start[sU + 1]
        if i < 8:
            spread(w1(i, list(range(NA1))), last_of[sG] + 3, nxt - 1)
            spread(w1(i, list(range(NA1, 16))) + w2(i), max(nxt, last_of[sU] + 3), stage_start[sU + 2] - 2)
        else:
            spread(w1(i, list(range(16))), last_of[sG] + 3, nxt - 1)
            spread(w2(i), last_of[sU] + 3, nxt + 13)
    tail = []
    for tile in range(18):
        acc = vGb if tile % 2 == 0 else vGa
        pk = vH + 8 * (tile % 2)
        l = []
        if tile % 2 == 0:
            l.append(Ins(f"s_add_u32 s43, s35, {tile * 2048}"))
        for hlf in range(2):
            for e in range(4):
                l.append(Ins(f"v_cvt_pk_bf16_f32 v{pk + 4*hlf + e}, v{acc + 8*hlf + 2*e}, v{acc + 8*hlf + 2*e + 1}"))
            o = (tile % 2) * 2048 + hlf * 1024
            off = f" offset:{o}" if o else ""
            l.append(Ins(f"buffer_store_dwordx4 v[{pk+4*hlf}:{pk+4*hlf+3}], v{vSt}, s[24:27], s43 offen{off}{stflag}"))
        if tile < 17:
            lo = chain_last[tile] + 3
            if tile == 0: lo += 0
            spread(l, lo, lo + 10)
        else:
            tail = l
    for i in gaps[0]: b.add(i)
    for g in range(NM):
        m = M[g]
        needs = []
        if g + 1 < NM and M[g + 1]['rd'] is not None and g % 2 == 0 and M[g + 1]['rp'] <= g - 3:
            needs = [f"rd{g+1}"]
        c = "0" if m['c0'] else acc_str(m['acc'])
        b(f"v_mfma_f32_32x32x16_bf16 {acc_str(m['acc'])}, {m['a']}, {m['b']}, {c}", needs=needs)
        for i in gaps[g + 1]: b.add(i)
    for i in tail: b.add(i)
    if stamps:
        b("s_memtime s[4:5]")
        b("s_waitcnt vmcnt(0)")
        b("s_memtime s[6:7]")
        b("s_waitcnt lgkmcnt(0)")
        b("v_mov_b32 v16, 0")
        for k in range(27): b(f"v_writelane_b32 v16, s{48+2*k}, {k}")
        b("v_writelane_b32 v16, s4, 27")
        b("v_writelane_b32 v16, s6, 28")
        b("s_getreg_b32 s4, hwreg(HW_REG_XCC_ID)")
        b("v_writelane_b32 v16, s4, 29")
        b("s_lshl_b32 s42, s2, 2\ns_add_u32 s42, s42, s28\ns_lshl_b32 s42, s42, 7")
        b(f"s_add_u32 s42, s42, {ST_OFF}")
        b(f"v_lshlrev_b32 v20, 2, v{vLane}")
        b("s_mov_b32 exec_hi, 0")
        b("buffer_store_dword v16, v20, s[20:23], s42 offen")
    ins = finalize(b.ins, opt.get('verbose', False))
    txt = khead(name) + "\n" + render(ins) + f"\n{name}_end:\n  s_endpgm\n"
    return txt, kdesc(name, 256, NA, 102), K3_LDS, max(cost)

def write_k3(path, **kw):
    txt, desc, lds, mc = gen_k3(**kw)
    o = [f"; @launch kernel=ffn_kernel grid=(256,1,1) block=(256,1,1) lds={lds}",
         '.amdgcn_target "amdgcn-amd-amdhsa--gfx950"', ".text", txt, '.section .rodata,"a"', desc]
    open(path, "w").write("\n".join(o) + "\n")
if __name__ == "__main__":
    write_k3("k3.s", stamps=True, opt=dict(verbose=True))
```

```python
from asmgen import *
from k3 import H_OFF, P_OFF, PSZ

def gen_k5(name="red_kernel", NP=16, opt=None):
    opt = opt or {}
    b = Block()
    b("s_cmp_ge_u32 s2, 256")
    b(f"s_cbranch_scc1 {name}_end")
    b("s_load_dwordx2 s[4:5], s[0:1], 72")
    b("s_load_dwordx2 s[6:7], s[0:1], 88")
    b("v_and_b32 v1, 63, v0")
    b("v_lshrrev_b32 v2, 6, v0")
    b("v_readfirstlane_b32 s28, v2")
    b("s_and_b32 s29, s2, 7")
    b("s_lshl_b32 s29, s29, 3")
    b("s_bfe_u32 s30, s2, 0x30003")
    b("s_or_b32 s29, s29, s30")
    b("s_lshr_b32 s30, s2, 6")
    b("s_mul_i32 s30, s30, 9")
    b("s_add_u32 s30, s30, s28")
    b("s_mul_i32 s31, s29, 36864")
    b("s_lshl_b32 s32, s30, 10")
    b("s_add_u32 s31, s31, s32")
    b("v_lshlrev_b32 v3, 4, v1")
    b("s_waitcnt lgkmcnt(0)")
    srd(b, 8, 6, NP * PSZ, P_OFF)
    srd(b, 12, 6, PSZ, H_OFF)
    srd(b, 16, 4, 2048 * 1152)
    vP = 16
    b("s_mov_b32 s33, s31")
    ld = opt.get('ldflag', '')
    for p in range(NP):
        b(f"buffer_load_dwordx4 v[{vP+4*p}:{vP+4*p+3}], v3, s[8:11], s33 offen{ld}")
        if p < NP - 1: b(f"s_add_u32 s33, s33, {PSZ}")
    vHh = vP + 4 * NP
    b(f"buffer_load_dwordx4 v[{vHh}:{vHh+3}], v3, s[12:15], s31 offen")
    b("v_and_b32 v4, 31, v1")
    b("s_mov_b32 s34, 73728")
    b("v_mul_lo_u32 v4, v4, s34")
    b("v_lshrrev_b32 v5, 5, v1")
    b("v_lshl_add_u32 v4, v5, 4, v4")
    b("s_mul_i32 s34, s29, 1152")
    b("s_lshl_b32 s35, s30, 5")
    b("s_add_u32 s34, s34, s35")
    b("s_mov_b32 s36, 0x00003f80")
    b("s_mov_b32 s37, 0x3f800000")
    S = 8
    for r in range(4):
        b(f"v_lshlrev_b32 v{S+2*r}, 16, v{vP+r}")
        b(f"v_and_b32 v{S+2*r+1}, 0xffff0000, v{vP+r}")
    for p in range(1, NP):
        for r in range(4):
            b(f"v_dot2c_f32_bf16 v{S+2*r}, s36, v{vP+4*p+r}")
            b(f"v_dot2c_f32_bf16 v{S+2*r+1}, s37, v{vP+4*p+r}")
    for i in range(4):
        b(f"v_permlane32_swap_b32 v{S+i}, v{S+4+i}")
    for r in range(4):
        b(f"v_dot2c_f32_bf16 v{S+2*r}, s36, v{vHh+r}")
        b(f"v_dot2c_f32_bf16 v{S+2*r+1}, s37, v{vHh+r}")
    for r in range(4):
        b(f"v_cvt_pk_bf16_f32 v{vP+r}, v{S+2*r}, v{S+2*r+1}")
    b(f"buffer_store_dwordx4 v[{vP}:{vP+3}], v4, s[16:19], s34 offen")
    ins = finalize(b.ins)
    txt = khead(name) + "\n" + render(ins) + f"\n{name}_end:\n  s_endpgm\n"
    return txt, kdesc(name, vHh + 4, 0, 48), 0
```

```python
import sys
import k1, k2, k3, k5
HDR = open('sequential_preLN__spectral_fnet__swiglu_ffn__prompt.s.ref').read().split('; Override launch')[0] if __import__('os').path.exists('sequential_preLN__spectral_fnet__swiglu_ffn__prompt.s.ref') else ''
def build_all(path, o1=None, o2=None, o3=None, o5=None, k3kw=None, extra_launch=()):
    t1, d1, l1, g1 = k1.gen_k1(opt=o1)
    t2, d2, l2, g2 = k2.gen_k2(opt=o2)
    t3, d3, l3, _ = k3.gen_k3(opt=o3, code_end='red_kernel_end', **(k3kw or {}))
    t5, d5, l5 = k5.gen_k5(opt=o5)
    o = [HDR.rstrip(),
         f"; @launch kernel=hid_kernel grid=({g1},1,1) block=(256,1,1) lds={l1}",
         f"; @launch kernel=fft_kernel grid=({g2},1,1) block=(512,1,1) lds={l2}",
         f"; @launch kernel=ffn_kernel grid=(256,1,1) block=(256,1,1) lds={l3}",
         f"; @launch kernel=red_kernel grid=(256,1,1) block=(576,1,1) lds={l5}"]
    o += list(extra_launch)
    o += ['.amdgcn_target "amdgcn-amd-amdhsa--gfx950"', ".text", t1, t2, t3, t5, '.section .rodata,"a"', d1, d2, d3, d5]
    open(path, "w").write("\n".join(x for x in o if x) + "\n")
if __name__ == "__main__":
    build_all(sys.argv[1] if len(sys.argv) > 1 else "sequential_preLN__spectral_fnet__swiglu_ffn__prompt.s")
```

```python
import re

def expand(op):
    op = op.strip()
    neg = op.lstrip('-')
    m = re.fullmatch(r'(?:abs\()?([vas])\[(\d+):(\d+)\]\)?', neg)
    if m:
        return [f"{m.group(1)}{i}" for i in range(int(m.group(2)), int(m.group(3)) + 1)]
    m = re.fullmatch(r'(?:abs\(|\|)?([vas])(\d+)(?:\)|\|)?', neg)
    if m:
        return [f"{m.group(1)}{m.group(2)}"]
    if neg in ('vcc', 'exec', 'm0', 'scc'):
        return [neg]
    if neg in ('vcc_lo', 'vcc_hi'):
        return ['vcc']
    if neg in ('exec_lo', 'exec_hi'):
        return ['exec']
    return []

TRANS = ('v_exp_f32', 'v_log_f32', 'v_rcp_f32', 'v_rsq_f32', 'v_sqrt_f32', 'v_sin_f32', 'v_cos_f32')

class Ins:
    __slots__ = ('text', 'mn', 'kind', 'rd', 'wr', 'tok', 'needs', 'srcc', 'srcab', 'passes', 'ws', 'comment', 'dpp', 'sdwa', 'data', 'hide')
    def __init__(self, text, tok=None, needs=(), comment=None):
        self.text = text.strip()
        self.tok = tok
        self.needs = list(needs)
        self.comment = comment
        self.srcc = []; self.srcab = []; self.passes = 0; self.ws = 1
        self.data = []
        self.hide = False
        t = self.text
        parts = t.split(None, 1)
        mn = parts[0]
        self.mn = mn
        rest = parts[1] if len(parts) > 1 else ''
        ops = []; depth = 0; cur = ''
        for ch in rest:
            if ch in '[(': depth += 1
            if ch in '])': depth -= 1
            if ch == ',' and depth == 0:
                ops.append(cur.strip()); cur = ''
            else:
                cur += ch
        if cur.strip(): ops.append(cur.strip())
        mods = ''
        if ops:
            l = ops[-1].split(None, 1)
            ops[-1] = l[0]
            if len(l) > 1: mods = l[1]
        self.dpp = mn.endswith('_dpp')
        self.sdwa = mn.endswith('_sdwa')
        rd = []; wr = []
        E = expand
        if mn.endswith(':') or mn.startswith('.') or mn.startswith(';'):
            self.kind = 'label'; self.ws = 0
        elif mn.startswith('v_mfma'):
            self.kind = 'mfma'
            wr = E(ops[0]); self.srcab = E(ops[1]) + E(ops[2]); self.srcc = E(ops[3])
            rd = self.srcab + self.srcc
            self.passes = 8 if '32x32' in mn else (2 if '4x4x4' in mn else 4)
        elif mn.startswith('v_'):
            base = re.sub(r'_(e32|e64|dpp|sdwa)$', '', mn)
            self.kind = 'trans' if base in TRANS else ('dot' if base.startswith('v_dot') else 'valu')
            if base.startswith('v_cmp'):
                wr = E(ops[0]); rd = sum((E(o) for o in ops[1:]), [])
                if base.startswith('v_cmpx'): wr += ['exec']
            elif base.startswith('v_permlane') and 'swap' in base:
                wr = E(ops[0]) + E(ops[1]); rd = list(wr)
            elif base in ('v_add_co_u32', 'v_sub_co_u32', 'v_addc_co_u32', 'v_subrev_co_u32'):
                wr = E(ops[0]) + E(ops[1]); rd = sum((E(o) for o in ops[2:]), [])
            elif base == 'v_nop':
                pass
            else:
                wr = E(ops[0]); rd = sum((E(o) for o in ops[1:]), [])
                if base in ('v_fmac_f32', 'v_dot2c_f32_bf16', 'v_pk_fmac_f16', 'v_writelane_b32') or self.dpp or self.sdwa:
                    rd += E(ops[0])
            rd += ['exec']
        elif mn.startswith('ds_'):
            self.kind = 'ds'
            if mn.startswith('ds_read') or mn.startswith('ds_bpermute') or mn.startswith('ds_swizzle') or mn.startswith('ds_permute'):
                wr = E(ops[0]); rd = sum((E(o) for o in ops[1:]), [])
            else:
                rd = sum((E(o) for o in ops), [])
            rd += ['exec']
        elif mn.startswith('buffer_') or mn.startswith('global_'):
            self.kind = 'vmem'
            lds = (' lds' in (' ' + mods)) or '_lds_' in mn
            if mn in ('buffer_wbl2', 'buffer_inv'):
                pass
            elif lds:
                rd = sum((E(o) for o in ops), []) + ['m0']
                self.kind = 'dma'
            elif '_load' in mn:
                wr = E(ops[0]); rd = sum((E(o) for o in ops[1:]), [])
            elif '_store' in mn or '_atomic' in mn:
                rd = sum((E(o) for o in ops), [])
                if mn.startswith('buffer_'): self.data = E(ops[0])
                else: self.data = E(ops[1])
                if '_atomic' in mn and 'sc0' in mods:
                    wr = E(ops[0])
            rd += ['exec']
        elif mn.startswith('s_load') or mn.startswith('s_memtime') or mn.startswith('s_memrealtime') or mn.startswith('s_buffer_load'):
            self.kind = 'smem'
            wr = E(ops[0]); rd = sum((E(o) for o in ops[1:]), [])
        elif mn == 's_nop':
            self.kind = 'nop'; self.ws = int(ops[0], 0) + 1
        elif mn in ('s_waitcnt', 's_barrier', 's_endpgm', 's_setprio', 's_sleep', 's_branch') or mn.startswith('s_cbranch'):
            self.kind = 'ctl'
            if mn.startswith('s_cbranch_scc'): rd = ['scc']
            if mn.startswith('s_cbranch_vcc'): rd = ['vcc']
            if mn.startswith('s_cbranch_exec'): rd = ['exec']
        elif mn.startswith('s_cmp') or mn.startswith('s_bitcmp'):
            self.kind = 'salu'; wr = ['scc']; rd = sum((E(o) for o in ops), [])
        elif mn.startswith('s_'):
            self.kind = 'salu'
            wr = E(ops[0]) + ['scc']; rd = sum((E(o) for o in ops[1:]), [])
            if mn.startswith('s_mov') or mn.startswith('s_getpc') or mn.startswith('s_getreg') or mn.startswith('s_mul') or mn.startswith('s_cselect'):
                wr = E(ops[0])
            if mn.startswith('s_cselect') or mn.startswith('s_addc') or mn.startswith('s_subb'): rd += ['scc']
            if 'saveexec' in mn: wr += ['exec']; rd += ['exec']
            if mn in ('s_addk_i32', 's_mulk_i32'): rd += E(ops[0])
        else:
            raise ValueError("unknown instruction: " + t)
        self.rd = set(rd); self.wr = set(wr)
        if tok == 'touch': self.wr = set()
    def isvalu(self):
        return self.kind in ('valu', 'trans', 'dot')

def insert_waits(ins):
    out = []
    vm = []
    lg = []
    def do_wait(nvm, nlg):
        nonlocal vm, lg
        parts = []
        if nvm is not None:
            assert nvm <= 63
            parts.append(f"vmcnt({nvm})"); vm = vm[len(vm) - nvm:] if nvm else []
        if nlg is not None:
            nlg = min(nlg, 15)
            parts.append(f"lgkmcnt({nlg})"); lg = lg[len(lg) - nlg:] if nlg else []
        out.append(Ins("s_waitcnt " + " ".join(parts)))
    for i in ins:
        if i.mn == 's_waitcnt':
            m = re.search(r'vmcnt\((\d+)\)', i.text)
            if m:
                n = int(m.group(1)); vm = vm[max(0, len(vm) - n):] if n else []
            m = re.search(r'lgkmcnt\((\d+)\)', i.text)
            if m:
                n = int(m.group(1))
                if n == 0: lg = []
                elif not any(o['smem'] for o in lg): lg = lg[max(0, len(lg) - n):]
            out.append(i); continue
        touch = i.rd | i.wr
        nvm = None; nlg = None
        for k, o in enumerate(vm):
            if (o['regs'] & touch) or (o['tok'] is not None and o['tok'] in i.needs):
                nvm = len(vm) - k - 1
        for k, o in enumerate(lg):
            if (o['regs'] & touch) or (o['tok'] is not None and o['tok'] in i.needs):
                nlg = len(lg) - k - 1
        if nlg is not None and any(o['smem'] for o in lg): nlg = 0
        if nvm is not None and nvm > 63: nvm = 63
        if nvm is not None or nlg is not None:
            do_wait(nvm, nlg)
        out.append(i)
        if i.kind in ('vmem', 'dma') and i.tok == 'uncounted':
            assert not i.wr
        elif i.kind in ('vmem', 'dma'):
            vm.append(dict(regs=set(i.wr), tok=i.tok))
            if len(vm) > 63:
                pass
        elif i.kind == 'ds':
            lg.append(dict(regs=set(i.wr), tok=i.tok, smem=False))
        elif i.kind == 'smem':
            lg.append(dict(regs=set(i.wr), tok=i.tok, smem=True))
    return out

def need_states(p, c):
    n = 0
    pw = p.wr
    if p.isvalu():
        vw = {r for r in pw if r[0] in 'va' and r not in ('vcc',)}
        sw = {r for r in pw if r[0] == 's' and r != 'scc' or r == 'vcc'}
        if c.kind == 'mfma' and (vw & c.rd): n = max(n, 2)
        if c.isvalu():
            if p.kind == 'trans' and c.kind != 'trans' and (vw & c.rd): n = max(n, 1)
            if p.kind == 'trans' and c.kind == 'trans' and (vw & c.rd): n = max(n, 1)
            if p.sdwa and (vw & (c.rd | c.wr)): n = max(n, 1)
            if (c.mn.startswith('v_readfirstlane') or c.mn.startswith('v_readlane')) and (vw & c.rd): n = max(n, 1)
            if c.mn.startswith('v_permlane') and (vw & c.rd): n = max(n, 2)
            if c.dpp and (vw & c.rd): n = max(n, 2)
            if sw & c.rd: n = max(n, 4 if (c.mn.startswith('v_readlane') or c.mn.startswith('v_writelane')) else 2)
            if 'exec' in pw and c.dpp: n = max(n, 5)
            if 'exec' in pw and (c.mn.startswith('v_readfirstlane') or c.mn.startswith('v_readlane') or c.mn.startswith('v_permlane')): n = max(n, 4)
        if p.kind == 'dot':
            if vw & (c.rd | c.wr):
                same = (c.mn == p.mn)
                if same and c.kind == 'dot':
                    ops_ab = set()
                    m = c.text.split(None, 1)[1].split(',')
                    for o in m[1:3]: ops_ab |= set(expand(o.strip().split()[0]))
                    if vw & ops_ab: n = max(n, 3)
                else:
                    n = max(n, 3)
        if c.kind in ('vmem', 'dma') and (sw & c.rd): n = max(n, 5)
        if c.kind == 'salu' and (sw & c.rd): n = max(n, 1)
        if 'exec' in pw and c.kind == 'mfma': n = max(n, 4)
    if p.kind == 'mfma':
        ix = {2: 0, 4: 1, 8: 2}[p.passes]
        D = pw
        if c.kind == 'mfma':
            if D & set(c.srcab): n = max(n, (5, 8, 12)[ix])
            if D & set(c.srcc):
                if set(c.srcc) == D and c.passes == p.passes: n = max(n, (2, 0, 0)[ix])
                else: n = max(n, (4, 6, 10)[ix])
            elif D & c.wr:
                n = max(n, (4, 6, 10)[ix])
        elif c.isvalu() or c.kind in ('vmem', 'dma', 'ds'):
            if D & (c.rd | c.wr): n = max(n, (5, 8, 12)[ix])
            if c.isvalu() and (set(p.srcc) & c.wr): n = max(n, (1, 3, 7)[ix])
    if p.kind == 'salu' and 'm0' in pw and c.kind == 'dma': n = max(n, 1)
    if p.kind == 'vmem' and p.data and len(p.data) >= 3:
        if set(p.data) & c.wr: n = max(n, 2 if c.isvalu() else 1)
    if p.kind == 'ds' and p.mn.startswith('ds_write') :
        pass
    return n

def insert_nops(ins, verbose=False):
    out = []
    added = 0
    for c in ins:
        if c.kind == 'label':
            out.append(c); continue
        dist = 0; need = 0
        for p in reversed(out[-40:]):
            r = need_states(p, c)
            if r > dist: need = max(need, r - dist)
            dist += p.ws
            if dist >= 13: break
        while need > 0:
            k = min(need, 16)
            out.append(Ins(f"s_nop {k - 1}")); added += k
            if verbose: print("nop", k, "before", c.text)
            need -= k
        out.append(c)
    return out, added

def finalize(ins, verbose=False):
    ins = insert_waits(ins)
    ins, added = insert_nops(ins, verbose)
    return ins

def render(ins):
    o = []
    for i in ins:
        if i.hide: continue
        t = i.text if i.kind == 'label' else "  " + i.text
        if i.comment: t += "  ; " + i.comment
        o.append(t)
    return "\n".join(o)

class Block:
    def __init__(self):
        self.ins = []
    def __call__(self, text, tok=None, needs=(), comment=None):
        for line in text.split("\n"):
            if line.strip():
                self.ins.append(Ins(line, tok=tok, needs=needs, comment=comment))
        return self.ins[-1]
    def phantom(self, tok, n=1):
        for _ in range(n):
            i = Ins("buffer_wbl2", tok=tok); i.hide = True; i.ws = 0
            self.ins.append(i)
    def add(self, i):
        self.ins.append(i)

def kdesc(name, vgpr, agpr, sgpr=96):
    acc = (vgpr + 3) // 4 * 4
    nfv = acc + agpr if agpr else vgpr
    return f""".p2align 6
.amdhsa_kernel {name}
  .amdhsa_next_free_vgpr {nfv}
  .amdhsa_next_free_sgpr {sgpr}
  .amdhsa_accum_offset {acc}
  .amdhsa_group_segment_fixed_size 0
  .amdhsa_kernarg_size 96
  .amdhsa_user_sgpr_count 2
  .amdhsa_user_sgpr_kernarg_segment_ptr 1
  .amdhsa_system_sgpr_workgroup_id_x 1
  .amdhsa_float_denorm_mode_32 3
.end_amdhsa_kernel"""

def khead(name):
    return f".globl {name}\n.p2align 8\n.type {name},@function\n{name}:"

def srd(b, d, base, nbytes, off=0):
    if off:
        b(f"s_add_u32 s{d}, s{base}, {off}")
        b(f"s_addc_u32 s{d+1}, s{base+1}, 0")
    else:
        b(f"s_mov_b32 s{d}, s{base}")
        b(f"s_mov_b32 s{d+1}, s{base+1}")
    b(f"s_mov_b32 s{d+2}, {nbytes}")
    b(f"s_mov_b32 s{d+3}, 0x20000")

RT_OFF = 0x780000
def rt_begin(b):
    b("s_memrealtime s[90:91]")
    b("s_memtime s[92:93]")
def rt_end(b, kidx, wave_sgpr=28):
    b("s_waitcnt vmcnt(0) lgkmcnt(0)")
    b("s_memrealtime s[94:95]")
    b("s_memtime s[96:97]")
    b("s_load_dwordx2 s[98:99], s[0:1], 88")
    b("s_waitcnt lgkmcnt(0)")
    b(f"s_add_u32 s84, s98, {RT_OFF + kidx * 0x10000}")
    b("s_addc_u32 s85, s99, 0")
    b("s_mov_b32 s86, 0x10000")
    b("s_mov_b32 s87, 0x20000")
    b("s_mov_b64 exec, -1")
    b("v_mov_b32 v4, s90\nv_mov_b32 v5, s94\nv_mov_b32 v6, s92\nv_mov_b32 v7, s96")
    b("s_lshl_b32 s88, s2, 4")
    b(f"s_add_u32 s88, s88, s{wave_sgpr}")
    b("s_lshl_b32 s88, s88, 4")
    b("v_mov_b32 v3, 0")
    b("s_mov_b64 exec, 1")
    b("buffer_store_dwordx4 v[4:7], v3, s[84:87], s88 offen")

SP_OFF = 0x700000
class Stamps:
    def __init__(self, on, kidx):
        self.on = on; self.n = 0; self.k = kidx; self.names = []
    def __call__(self, b, name):
        if not self.on: return
        assert self.n < 17
        b(f"s_memtime s[{48+2*self.n}:{49+2*self.n}]")
        b("s_waitcnt lgkmcnt(0)")
        self.names.append(name); self.n += 1
    def dump(self, b, wave_sgpr=28):
        if not self.on: return
        b("s_waitcnt vmcnt(0)")
        self(b, "end")
        b("s_load_dwordx2 s[98:99], s[0:1], 88")
        b("s_waitcnt lgkmcnt(0)")
        b(f"s_add_u32 s84, s98, {SP_OFF}")
        b("s_addc_u32 s85, s99, 0")
        b("s_mov_b32 s86, 0x80000")
        b("s_mov_b32 s87, 0x20000")
        b("s_mov_b64 exec, -1")
        b("v_mov_b32 v4, 0")
        for k in range(self.n): b(f"v_writelane_b32 v4, s{48+2*k}, {k}")
        b("v_mbcnt_lo_u32_b32 v3, -1, 0")
        b("v_lshlrev_b32 v3, 2, v3")
        b("s_lshl_b32 s88, s2, 4")
        b(f"s_add_u32 s88, s88, s{wave_sgpr}")
        b("s_lshl_b32 s88, s88, 7")
        b("s_mov_b32 exec_hi, 0")
        b("buffer_store_dword v4, v3, s[84:87], s88 offen")

def code_srd(b, d, lab_start, lab_end, uniq):
    b(f"s_getpc_b64 s[{d}:{d+1}]")
    b(f"{uniq}:")
    b(f"s_add_u32 s{d}, s{d}, {lab_start}-{uniq}")
    b(f"s_addc_u32 s{d+1}, s{d+1}, 0")
    b(f"s_mov_b32 s{d+2}, {lab_end}-{lab_start}")
    b(f"s_mov_b32 s{d+3}, 0x20000")
```

```python
from asmgen import *
from k3 import T_OFF, X_OFF, Z_OFF, MX_OFF
import struct
def fl(x): return hex(struct.unpack('<I', struct.pack('<f', x))[0])
K1_LDS = 86016
XL = 73728

def gen_k1(name="hid_kernel", opt=None, code_lo="fft_kernel", code_hi="red_kernel_end"):
    opt = opt or {}
    NMAIN = 192
    LA = opt.get('la', 3)
    NB = opt.get('nb', 3)
    sp = Stamps(opt.get('sp'), 0)
    h = Block()
    h("s_cmp_ge_u32 s2, 256")
    h(f"s_cbranch_scc1 {name}_end")
    if opt.get('rt'): rt_begin(h)
    sp(h, 'start')
    h("s_load_dwordx2 s[4:5], s[0:1], 0")
    h("s_load_dwordx2 s[6:7], s[0:1], 88")
    h("s_load_dwordx4 s[24:27], s[0:1], 48")
    if opt.get('own', 1):
        code_srd(h, 16, f"{name}_pc", f"{name}_end", f"{name}_pc")
        h("v_lshlrev_b32 v2, 7, v0")
        h("buffer_load_dword v3, v2, s[16:19], 0 offen")
    h("v_and_b32 v1, 63, v0")
    h("v_lshrrev_b32 v4, 6, v0")
    h("v_readfirstlane_b32 s28, v4")
    h(f"s_cmp_ge_u32 s2, {NMAIN}")
    h(f"s_cbranch_scc1 {name}_side")
    h("s_and_b32 s29, s2, 7")
    h("s_lshl_b32 s29, s29, 2")
    h("s_bfe_u32 s31, s2, 0x20003")
    h("s_or_b32 s29, s29, s31")
    h("s_lshr_b32 s30, s2, 5")
    h("v_and_b32 v12, 31, v1")
    h("v_lshrrev_b32 v13, 5, v1")
    h("v_bfe_u32 v14, v1, 1, 3")
    h("v_xor_b32 v14, v14, v13")
    h("v_lshlrev_b32 v14, 4, v14")
    vA = 16
    h(f"v_lshl_add_u32 v{vA}, v12, 7, v14")
    for ks in range(1, 4): h(f"v_xor_b32 v{vA+ks}, {32*ks}, v{vA}")
    h("s_mov_b32 s44, 0x3f803f80")
    h("s_cmp_lg_u32 s28, 3")
    h(f"s_cbranch_scc1 {name}_main")
    vFr = 64
    per = 36 // NB
    def kloop(b, work):
        def rd(s):
            if s % per == 0:
                b("s_barrier", needs=[f"d{B}" for B in range(9) if 4 * B < s + per])
                if b.main: sp(b, f'bar{s // per}')
            if s == 16:
                for ks in range(4): b(f"v_add_u32 v{vA+ks}, 32768, v{vA+ks}")
            B, ks = s // 4, s % 4
            o = B * 8192 - (32768 if s >= 16 else 0)
            for rg in range(2):
                r = vFr + 8 * (s % 4) + 4 * rg
                b(f"ds_read_b128 v[{r}:{r+3}], v{vA+ks} offset:{o + rg * 4096}")
        for s in range(LA): rd(s)
        for s in range(36):
            work(s)
            if s + LA < 36: rd(s + LA)
    b = Block(); b.main = True
    vW = 96
    vC = [240, 248]
    vK = 28; vS = 30
    b("s_mul_i32 s32, s30, 3")
    b("s_add_u32 s32, s32, s28")
    b("s_lshl_b32 s38, s32, 5")
    b("v_add_u32 v8, s38, v12")
    b("v_subrev_u32 v6, 288, v8")
    b("v_cmp_lt_u32 vcc, 288, v8")
    b("v_cndmask_b32 v5, v8, v6, vcc")
    b("v_cvt_f32_u32 v5, v5")
    b(f"v_mov_b32 v6, {fl(0.25)}")
    b("v_cndmask_b32 v6, 0, v6, vcc")
    b(f"v_mul_f32 v7, {fl(1/36)}, v5")
    b(f"v_mul_f32 v5, {fl(1/576)}, v5")
    b(f"v_cos_f32 v{vK}, v7")
    b("v_cvt_f32_u32 v7, v13")
    b(f"v_mul_f32 v7, {fl(8.0)}, v7")
    b("v_fmac_f32 v6, v5, v7")
    b(f"v_add_f32 v{vK}, v{vK}, v{vK}")
    b(f"v_mov_b32 v{vS}, 0")
    b(f"v_cndmask_b32 v{vS}, -1.0, v{vS}, vcc")
    b(f"v_mov_b32 v9, {fl(-1.25)}")
    for nn in (64, 128, 256):
        b(f"v_cmp_eq_u32 vcc, {nn}, v8")
        b(f"v_cndmask_b32 v{vS}, v{vS}, v9, vcc")
    b(f"v_mov_b32 v9, {fl(575.0)}")
    b("v_cmp_eq_u32 vcc, 0, v8")
    b(f"v_cndmask_b32 v{vS}, v{vS}, v9, vcc")
    b("v_cmp_gt_u32 vcc, 32, v1")
    b("v_mov_b32 v7, 0xffff0000")
    b("v_cndmask_b32 v7, -1, v7, vcc")
    def gen(kk):
        l = []
        c = vC[kk % 2]
        if kk % 18 < 2:
            for j in range(8): l.append(f"v_fmamk_f32 v{c+j}, v5, {fl(float(16*kk + j))}, v6")
            for j in range(8): l.append(f"v_cos_f32 v{c+j}, v{c+j}")
        else:
            p = vC[1 - kk % 2]
            if opt.get('pk', 1):
                for r in range(4):
                    l.append(f"v_pk_fma_f32 v[{c+2*r}:{c+2*r+1}], v[{p+2*r}:{p+2*r+1}], v[{vK}:{vK+1}], v[{c+2*r}:{c+2*r+1}] op_sel_hi:[1,0,1] neg_lo:[0,0,1] neg_hi:[0,0,1]")
            else:
                for j in range(8): l.append(f"v_fma_f32 v{c+j}, v{p+j}, v{vK}, -v{c+j}")
        for r in range(4): l.append(f"v_cvt_pk_bf16_f32 v{vW+4*kk+r}, v{c+2*r}, v{c+2*r+1}")
        if kk == 0: l.append(f"v_and_b32 v{vW}, v7, v{vW}")
        return l
    NG = opt.get('ng', 22)
    for kk in range(NG):
        for t in gen(kk): b(t)
    b("s_waitcnt lgkmcnt(0)")
    srd(b, 12, 6, 576 * 4096, T_OFF)
    b("v_lshlrev_b32 v11, 4, v13")
    b(f"v_add_u32 v11, {XL}, v11")
    b("v_lshlrev_b32 v10, 12, v12")
    b("v_lshl_add_u32 v10, v13, 4, v10")
    b("s_lshl_b32 s46, s32, 17")
    b("s_lshl_b32 s47, s29, 7")
    b("s_add_u32 s46, s46, s47")
    sp(b, 'gen')
    vAcc = [32, 48]
    def work(s):
        l = gen(s + NG) if s + NG < 36 else []
        for rg in range(2):
            r = vFr + 8 * (s % 4) + 4 * rg
            a = f"v[{vAcc[rg]}:{vAcc[rg]+15}]"
            b(f"v_mfma_f32_32x32x16_bf16 {a}, v[{r}:{r+3}], v[{vW+4*s}:{vW+4*s+3}], {'0' if s == 0 else a}")
            for t in (l[:len(l)//2] if rg == 0 else l[len(l)//2:]): b(t)
    kloop(b, work)
    sp(b, 'cmp')
    b("s_barrier")
    vM = vW
    for rg in range(2):
        for q in range(8): b(f"ds_read_b128 v[{vM+32*rg+4*q}:{vM+32*rg+4*q+3}], v11 offset:{256*rg + 32*q}")
    for rg in range(2):
        A, Mm, Rr, O = vAcc[rg], vM + 32 * rg, vM + 32 * rg + 16, vFr + 8 * rg
        for i in range(16): b(f"v_fmac_f32 v{A+i}, v{Mm+i}, v{vS}")
        for hf in range(2):
            for i in range(8 * hf, 8 * hf + 8): b(f"v_mul_f32 v{A+i}, v{A+i}, v{Rr+i}")
            for i in range(4 * hf, 4 * hf + 4): b(f"v_cvt_pk_bf16_f32 v{O+i}, v{A+2*i}, v{A+2*i+1}")
            o = 64 * rg + 32 * hf
            b(f"buffer_store_dwordx4 v[{O+4*hf}:{O+4*hf+3}], v10, s[12:15], s46 offen" + (f" offset:{o}" if o else ""))
    sp(b, 'sts')
    sp.dump(b)
    gen_k1.names = sp.names
    if opt.get('rt'): rt_end(b, 0)
    b("s_endpgm")
    nh = len(finalize(h.ins))
    main = finalize(h.ins + b.ins)[nh:]
    b = Block(); b.main = False
    b("v_lshrrev_b32 v5, 3, v1")
    b("s_mov_b32 s37, 73728")
    b("v_mul_lo_u32 v5, v5, s37")
    b("v_lshrrev_b32 v6, 4, v1")
    b("v_and_b32 v7, 7, v1")
    b("v_xor_b32 v6, v6, v7")
    b("v_lshlrev_b32 v6, 4, v6")
    b("v_xor_b32 v7, 64, v6")
    b("v_add_u32 v8, v5, v6")
    b(f"v_add_u32 v9, {8*73728 - 1024}, v5")
    b("v_add_u32 v9, v9, v7")
    b(f"v_add_u32 v10, {16*73728 - 2048}, v8")
    b(f"v_add_u32 v11, {16*73728 - 2048}, v9")
    b("s_mul_i32 s33, s29, 2304")
    b("s_waitcnt lgkmcnt(0)")
    srd(b, 8, 4, 2048 * 1152)
    b("s_mov_b32 m0, 0")
    b("s_add_u32 s34, s33, 1152")
    b(f"{name}_ld:")
    for rg in range(2):
        for i in range(4):
            off = f" offset:{i*1024}" if i else ""
            b(f"buffer_load_dwordx4 v{8+i}, s[8:11], s{33+rg} offen{off}{opt.get('xf', ' nt')} lds", tok='uncounted')
        b("s_add_u32 m0, m0, 4096")
        b(f"s_add_u32 s{33+rg}, s{33+rg}, 128")
    b("s_cmp_lt_u32 m0, 73728")
    b(f"s_cbranch_scc1 {name}_ld")
    for B in range(9): b.phantom(f"d{B}", 8)
    srd(b, 12, 6, 0x240000, X_OFF)
    srd(b, 16, 6, 0x4000, Z_OFF)
    b(f"s_mul_i32 s35, s29, {2*36864}")
    b("s_mul_i32 s37, s30, 6144")
    b("s_add_u32 s35, s35, s37")
    b("s_add_u32 s37, s35, 36864")
    vS = 32; vQ = 96; vOne = 30
    b(f"v_mov_b32 v{vOne}, s44\nv_mov_b32 v{vOne+1}, s44")
    b("v_lshlrev_b32 v15, 4, v1")
    b("v_lshrrev_b32 v5, 4, v12")
    b("v_lshlrev_b32 v5, 5, v5")
    b("v_bfe_u32 v6, v12, 2, 1")
    b("v_lshl_add_u32 v5, v6, 4, v5")
    b("v_bfe_u32 v6, v12, 3, 1")
    b("v_lshl_add_u32 v5, v6, 3, v5")
    b("v_and_b32 v6, 3, v12")
    b("v_lshl_add_u32 v5, v6, 1, v5")
    b("v_lshlrev_b32 v6, 2, v12")
    b(f"v_add_u32 v7, {XL}, v6")
    b("s_cmp_eq_u32 s30, 0")
    b("s_cselect_b32 s38, 0, 0x10000")
    b("s_lshl_b32 s39, s29, 7")
    b("s_add_u32 s39, s39, s38")
    b("s_lshl_b32 s40, s29, 8")
    b("s_add_u32 s40, s40, s38")
    b(f"s_add_u32 s40, s40, {MX_OFF - Z_OFF}")
    def swork(s):
        for rg in range(2):
            r = vFr + 8 * (s % 4) + 4 * rg
            if s == 0: b(f"v_lshlrev_b32 v{vS+8+rg}, 16, v{r}")
            for j in range(2):
                hr = f"v[{r+2*j}:{r+2*j+1}]"
                for w_, a in ((0, f"v[{vOne}:{vOne+1}]"), (1, hr)):
                    acc = vQ + 16 * rg + 8 * w_ + 4 * j
                    b(f"v_mfma_f32_4x4x4_16b_bf16 v[{acc}:{acc+3}], {a}, {hr}, {'0' if s == 0 else f'v[{acc}:{acc+3}]'}")
    kloop(b, swork)
    b("s_mov_b32 vcc_lo, 0xaaaaaaaa\ns_mov_b32 vcc_hi, 0xaaaaaaaa")
    b("s_mov_b32 s46, 0xcccccccc\ns_mov_b32 s47, 0xcccccccc")
    for rg in range(2):
        q = vQ + 16 * rg
        b(f"v_add_f32 v{vS+4*rg}, v{q}, v{q+4}")
        for i in range(4): b(f"v_add_f32 v{q+8+i}, v{q+8+i}, v{q+12+i}")
    for rg in range(2):
        q = vQ + 16 * rg
        b(f"v_cndmask_b32 v{q+8}, v{q+8}, v{q+9}, vcc")
        b(f"v_cndmask_b32 v{q+10}, v{q+10}, v{q+11}, vcc")
    for rg in range(2):
        q = vQ + 16 * rg
        b(f"v_cndmask_b32 v{vS+4*rg+2}, v{q+8}, v{q+10}, s[46:47]")
    for rg in range(2):
        for r in (0, 2): b(f"v_mov_b32 v{vS+4*rg+r+1}, v{vS+4*rg+r}")
    for rg in range(2):
        for r in (0, 2): b(f"v_permlane32_swap_b32 v{vS+4*rg+r+1}, v{vS+4*rg+r}")
    for rg in range(2):
        for r in (0, 2): b(f"v_add_f32 v{vS+4*rg+r}, v{vS+4*rg+r}, v{vS+4*rg+r+1}")
    for f in ["v_mul_f32 v{m}, 0xbae38e39, v{m}", "v_mul_f32 v{q}, 0x3ae38e39, v{q}", "v_fma_f32 v{q}, -v{m}, v{m}, v{q}",
              "v_max_f32 v{q}, 0, v{q}", "v_add_f32 v{q}, 0x3727c5ac, v{q}", "v_rsq_f32 v{q}, v{q}"]:
        for rg in range(2): b(f.format(m=vS + 4 * rg, q=vS + 4 * rg + 2))
    for rg in range(2):
        b(f"ds_write2_b32 v7, v{vS+4*rg}, v{vS+4*rg+2} offset0:{64*rg} offset1:{64*rg+32}", tok="sw")
    b("s_barrier", needs=["sw"])
    b("s_mul_i32 s41, s30, 6")
    b(f"v_subrev_u32 v{vA}, 32768, v{vA}")
    for i in range(6):
        b(f"s_add_u32 s42, s41, {i}")
        b("s_and_b32 s43, s42, 3")
        b("s_lshl_b32 s43, s43, 5")
        b("s_lshr_b32 s42, s42, 2")
        b("s_lshl_b32 s42, s42, 13")
        b(f"v_xor_b32 v{vA+1}, s43, v{vA}")
        b(f"v_add_u32 v{vA+1}, s42, v{vA+1}")
        for rg in range(2):
            r = 128 + 8 * i + 4 * rg
            b(f"ds_read_b128 v[{r}:{r+3}], v{vA+1} offset:{rg*4096}")
    for i in range(6):
        if i == 4: b("s_add_u32 s35, s35, 4096\ns_add_u32 s37, s37, 4096")
        off = f" offset:{(i%4)*1024}" if i % 4 else ""
        for rg in range(2):
            r = 128 + 8 * i + 4 * rg
            b(f"buffer_store_dwordx4 v[{r}:{r+3}], v15, s[12:15], s{35 + 2*rg} offen{off}")
    b("s_mov_b32 exec_hi, 0")
    for rg in range(2):
        b(f"v_add_f32 v{vS+8+rg}, v{vS+8+rg}, v{vS+4*rg}")
    for rg in range(2):
        b(f"v_mul_f32 v{vS+8+rg}, v{vS+8+rg}, v{vS+4*rg+2}")
    for rg in range(2):
        b(f"v_cvt_pk_bf16_f32 v{vS+8+rg}, v{vS+8+rg}, v{vS+8+rg}")
        b(f"buffer_store_short v{vS+8+rg}, v5, s[16:19], s39 offen" + (" offset:64" if rg else ""))
        b(f"buffer_store_dword v{vS+4*rg}, v6, s[16:19], s40 offen" + (" offset:128" if rg else ""))
    if opt.get('rt'): rt_end(b, 0)
    b("s_endpgm")
    stat = finalize(h.ins + b.ins)
    b = Block()
    b("v_lshlrev_b32 v2, 7, v1")
    b("s_sub_u32 s29, s2, 192")
    b("s_and_b32 s30, s29, 7")
    b("s_lshr_b32 s29, s29, 3")
    b("s_lshl_b32 s29, s29, 2")
    b("s_add_u32 s29, s29, s28")
    code_srd(b, 16, code_lo, code_hi, f"{name}_pc2")
    b("s_lshl_b32 s31, s29, 13")
    b("buffer_load_dword v5, v2, s[16:19], s31 offen")
    npf = opt.get('pfw', 1)
    if npf:
        b("v_mul_u32_u24 v6, 9216, v1")
        b("s_mul_i32 s30, s30, 1152")
        b("s_waitcnt lgkmcnt(0)")
        b(f"s_mov_b32 s10, {576*9216}")
        b("s_mov_b32 s11, 0x20000")
        for k in range(npf):
            b(f"s_add_u32 s32, s29, {32*k}")
            b("s_mul_i32 s33, s32, 57")
            b("s_lshr_b32 s33, s33, 9")
            b("s_mul_i32 s34, s33, 9")
            b("s_sub_u32 s34, s32, s34")
            b("s_bitcmp1_b32 s33, 0")
            b("s_cselect_b32 s8, s26, s24")
            b("s_cselect_b32 s9, s27, s25")
            b("s_lshr_b32 s33, s33, 1")
            b("s_lshr_b32 s35, s33, 1")
            b("s_bitcmp1_b32 s33, 0")
            b("s_cselect_b32 s33, 5, 0")
            b("s_add_u32 s33, s33, s35")
            b("s_lshl_b32 s33, s33, 7")
            b(f"s_mul_i32 s34, s34, {64*9216}")
            b("s_add_u32 s33, s33, s34")
            b("s_add_u32 s33, s33, s30")
            b(f"buffer_load_dword v{8+k}, v6, s[8:11], s33 offen{opt.get('pf', '')}")
    if opt.get('rt'): rt_end(b, 0)
    side = finalize([Ins("s_nop 4")] + b.ins)
    txt = (khead(name) + "\n" + render(stat) + f"\n{name}_side:\n" + render(side) + f"\n  s_endpgm\n{name}_main:\n" + render(main)
           + f"\n{name}_end:\n  s_endpgm\n")
    return txt, kdesc(name, 256, 0, 102 if opt.get('rt') or opt.get('sp') else 64), K1_LDS, 256
```

```python
from asmgen import *
from k3 import T_OFF, H_OFF, X_OFF, Z_OFF, MX_OFF, MU_OFF
import struct
def fl(x): return hex(struct.unpack('<I', struct.pack('<f', x))[0])
USTR = 72
ESTR = 32 * USTR + 64
K2_LDS = 8 * ESTR

def gen_k2(name="fft_kernel", opt=None, code_lo="ffn_kernel", code_hi="red_kernel_end"):
    opt = opt or {}
    b = Block()
    NMAIN = 144
    b("s_cmp_ge_u32 s2, 256")
    b(f"s_cbranch_scc1 {name}_end")
    if opt.get('rt'): rt_begin(b)
    sp = Stamps(opt.get('sp'), 1)
    sp(b, 'start')
    b("s_load_dwordx2 s[6:7], s[0:1], 88")
    b("s_load_dwordx4 s[20:23], s[0:1], 48")
    b("s_load_dwordx2 s[24:25], s[0:1], 64")
    b("v_and_b32 v1, 63, v0")
    b("v_lshrrev_b32 v2, 6, v0")
    b("v_readfirstlane_b32 s28, v2")
    b(f"s_cmp_ge_u32 s2, {NMAIN + 2}")
    b(f"s_cbranch_scc1 {name}_side")
    b(f"s_cmp_ge_u32 s2, {NMAIN}")
    b("s_cselect_b32 s42, 1, 0")
    b("s_cselect_b32 s43, s28, 0")
    b("s_cmp_lg_u32 s43, 0")
    b(f"s_cbranch_scc1 {name}_end")
    b("s_lshr_b32 s30, s2, 3")
    b("s_cmp_ge_u32 s30, 9")
    b("s_cselect_b32 s39, 1, 0")
    b("s_cselect_b32 s31, 9, 0")
    b("s_sub_u32 s30, s30, s31")
    b("s_and_b32 s29, s2, 7")
    b("s_mul_i32 s29, s29, 9")
    b("s_add_u32 s29, s29, s30")
    b("s_lshl_b32 s47, s39, 2")
    b("s_xor_b32 s47, s47, s28")
    b("s_lshl_b32 s30, s29, 3")
    b("s_add_u32 s30, s30, s47")
    b("s_sub_u32 s31, 576, s30")
    b("s_min_u32 s31, s31, s30")
    b("s_cmp_gt_u32 s30, 288")
    b("s_cselect_b32 s32, 0x80008000, 0")
    b("s_lshl_b32 s33, s31, 12")
    b(f"s_add_u32 s34, s33, {288*4096}")
    b("s_cmp_eq_u32 s31, 0")
    b(f"s_cselect_b32 s34, {576*4096}, s34")
    b("s_and_b32 s43, s2, 1")
    b("s_cmp_eq_u32 s42, 1")
    b("s_cselect_b32 s39, s43, s39")
    b(f"s_cselect_b32 s33, {Z_OFF - T_OFF}, s33")
    b(f"s_cselect_b32 s34, {Z_OFF - T_OFF + 4096}, s34")
    b(f"s_mov_b32 s44, {576*4096}")
    b("s_cselect_b32 s44, s34, s44")
    b("s_cselect_b32 s29, 0, s29")
    b("v_and_b32 v3, 31, v1")
    b("v_lshrrev_b32 v4, 5, v1")
    b("v_lshlrev_b32 v5, 6, v3")
    b("v_lshl_add_u32 v5, v4, 4, v5")
    b("v_mul_u32_u24 v7, 36864, v4")
    b("v_lshl_add_u32 v7, v3, 4, v7")
    b("s_lshl_b32 s37, s39, 3")
    b("s_add_u32 s37, s37, s28")
    b("s_lshl_b32 s45, s37, 9")
    b(f"s_add_u32 s45, s45, {MX_OFF - X_OFF}")
    b("v_lshlrev_b32 v6, 2, v1")
    b(f"s_mul_i32 s37, s37, {4*36864}")
    b("s_lshl_b32 s38, s29, 9")
    b("s_add_u32 s37, s37, s38")
    b(f"s_add_u32 s38, s37, {2*36864}")
    vC = 56; vS = 64; vN = 72
    vTC = 80; vTS = 96
    vF = 112
    vA = 176
    vCv = 8; vSv = 9
    idx = lambda i: 8 * (i // 4) + i % 4
    b("v_cvt_f32_u32 v10, v3")
    b("v_cvt_f32_u32 v11, v4")
    b("v_mul_f32 v11, 4.0, v11")
    b(f"v_mul_f32 v12, {fl(1/32)}, v10")
    b("v_mul_f32 v13, v12, v11")
    for i in range(16):
        if i == 0: b(f"v_mov_b32 v{vA}, v13")
        else: b(f"v_fmamk_f32 v{vA+i}, v12, {fl(float(idx(i)))}, v13")
    for i in range(16):
        b(f"v_cos_f32 v{vA+16+i}, v{vA+i}")
        b(f"v_sin_f32 v{vA+i}, v{vA+i}")
    b("s_waitcnt lgkmcnt(0)")
    sp(b, 'karg')
    srd(b, 8, 6, 's44', T_OFF)
    vX = 16
    for part in range(2):
        for p in range(2):
            for ks in range(2):
                r = vX + 16 * part + 8 * p + 4 * ks
                o = p * 2048 + ks * 32
                off = f" offset:{o}" if o else ""
                b(f"buffer_load_dwordx4 v[{r}:{r+3}], v5, s[8:11], s{33+part} offen{off}")
    srd(b, 12, 6, 0x800000 - X_OFF, X_OFF)
    srd(b, 16, 6, 0x240000, H_OFF)
    sp(b, 'ldiss')
    for i in range(8):
        b(f"v_cvt_pk_bf16_f32 v{vC+i}, v{vA+16+2*i}, v{vA+17+2*i}")
        b(f"v_cvt_pk_bf16_f32 v{vS+i}, v{vA+2*i}, v{vA+1+2*i}")
    for i in range(8):
        b(f"v_xor_b32 v{vN+i}, 0x80008000, v{vS+i}")
    b("s_lshl_b32 s40, s39, 5")
    b("v_add_u32 v12, s40, v3")
    b("v_cvt_f32_u32 v10, v12")
    b(f"v_mul_f32 v12, {fl(1/64)}, v10")
    b(f"v_cos_f32 v{vCv}, v12")
    b(f"v_sin_f32 v{vSv}, v12")
    b(f"v_mul_f32 v12, {fl(1/2048)}, v10")
    b("v_mul_f32 v13, v12, v11")
    for i in range(16):
        if i == 0: b(f"v_mov_b32 v{vTS}, v13")
        else: b(f"v_fmamk_f32 v{vTS+i}, v12, {fl(float(idx(i)))}, v13")
    for i in range(16):
        b(f"v_cos_f32 v{vTC+i}, v{vTS+i}")
        b(f"v_sin_f32 v{vTS+i}, v{vTS+i}")
    vXr = 48
    for k in range(2):
        b(f"buffer_load_dwordx4 v[{vXr+4*k}:{vXr+4*k+3}], v7, s[12:15], s{37+k} offen")
    vMx = 208
    for k in range(2):
        b(f"buffer_load_dword v{vMx+k}, v6, s[12:15], s45 offen" + (" offset:256" if k else ""))
    b(f"v_mul_u32_u24 v14, {USTR}, v3")
    b("v_lshl_add_u32 v14, v4, 3, v14")
    b(f"s_mul_i32 s36, s47, {ESTR}")
    b("v_add_u32 v14, s36, v14")
    b("v_bfe_u32 v12, v1, 2, 2")
    b(f"v_mul_u32_u24 v15, {ESTR}, v12")
    b("v_and_b32 v12, 3, v1")
    b("v_lshl_add_u32 v15, v12, 3, v15")
    b("v_bfe_u32 v12, v1, 4, 1")
    b("v_lshl_add_u32 v15, v12, 5, v15")
    b(f"v_mul_u32_u24 v12, {USTR}, v4")
    b("v_add_u32 v15, v15, v12")
    b(f"s_mul_i32 s36, s28, {4*USTR}")
    b("v_add_u32 v15, s36, v15")
    b("s_mov_b32 s40, 0x00003f80")
    b("s_mov_b32 s41, 0x3f800000")
    sp(b, 'const')
    if opt.get('sp'): b('s_waitcnt vmcnt(4)')
    sp(b, 'Tin')
    R = lambda r: f"v[{r}:{r+3}]"
    A16 = lambda r: f"v[{r}:{r+15}]"
    Xr = lambda p, ks: vX + 8 * p + 4 * ks
    Xi = lambda p, ks: vX + 16 + 8 * p + 4 * ks
    for p in range(2):
        Fr, Fi = vF + 32 * p, vF + 32 * p + 16
        for ks in range(2):
            b(f"v_mfma_f32_32x32x16_bf16 {A16(Fr)}, {R(Xr(p,ks))}, {R(vC+4*ks)}, {'0' if ks == 0 else A16(Fr)}")
            b(f"v_mfma_f32_32x32x16_bf16 {A16(Fi)}, {R(Xr(p,ks))}, {R(vN+4*ks)}, {'0' if ks == 0 else A16(Fi)}")
        if p == 0:
            for i in range(8): b(f"v_xor_b32 v{vX+16+i}, s32, v{vX+16+i}")
    for i in range(8, 16): b(f"v_xor_b32 v{vX+16+i}, s32, v{vX+16+i}")
    for p in (1, 0):
        Fr, Fi = vF + 32 * p, vF + 32 * p + 16
        for ks in range(2):
            b(f"v_mfma_f32_32x32x16_bf16 {A16(Fr)}, {R(Xi(p,ks))}, {R(vS+4*ks)}, {A16(Fr)}")
            b(f"v_mfma_f32_32x32x16_bf16 {A16(Fi)}, {R(Xi(p,ks))}, {R(vC+4*ks)}, {A16(Fi)}")
    F0r, F0i, F1r, F1i = vF, vF + 16, vF + 32, vF + 48
    for k in range(2):
        t = vA + 16 + 8 * k
        for r in range(4):
            b(f"v_lshlrev_b32 v{t+2*r}, 16, v{vXr+4*k+r}")
            b(f"v_and_b32 v{t+2*r+1}, 0xffff0000, v{vXr+4*k+r}")
        for i in range(8): b(f"v_add_f32 v{t+i}, v{t+i}, v{vMx+k}")
    sp(b, 'st1')
    Zr, Zi = vX, vX + 8
    D2 = vX + 16
    for i0 in range(0, 16, 4):
        g = range(i0, i0 + 4)
        for i in g:
            b(f"v_fmac_f32 v{F0r+i}, v{F1r+i}, v{vCv}")
            b(f"v_fmac_f32 v{F0i+i}, v{F1i+i}, v{vCv}")
        for i in g:
            b(f"v_fmac_f32 v{F0r+i}, v{F1i+i}, v{vSv}")
            b(f"v_fma_f32 v{F0i+i}, -v{F1r+i}, v{vSv}, v{F0i+i}")
        tmp = vA + (i0 & 4) * 2
        for i in g:
            b(f"v_mul_f32 v{tmp+i-i0}, v{F0r+i}, v{vTC+i}")
            b(f"v_mul_f32 v{tmp+4+i-i0}, v{F0i+i}, v{vTC+i}")
        for i in g:
            b(f"v_fmac_f32 v{tmp+i-i0}, v{F0i+i}, v{vTS+i}")
            b(f"v_fma_f32 v{tmp+4+i-i0}, -v{F0r+i}, v{vTS+i}, v{tmp+4+i-i0}")
        for h in range(2):
            b(f"v_cvt_pk_bf16_f32 v{Zr+i0//2+h}, v{tmp+2*h}, v{tmp+2*h+1}")
            b(f"v_cvt_pk_bf16_f32 v{Zi+i0//2+h}, v{tmp+4+2*h}, v{tmp+4+2*h+1}")
        if i0 in (4, 12):
            ks = i0 // 8
            b(f"v_mfma_f32_32x32x16_bf16 {A16(D2)}, {R(vC+4*ks)}, {R(Zr+4*ks)}, {'0' if ks == 0 else A16(D2)}")
            b(f"v_mfma_f32_32x32x16_bf16 {A16(D2)}, {R(vS+4*ks)}, {R(Zi+4*ks)}, {A16(D2)}")
    b("s_cmp_eq_u32 s42, 1")
    b(f"s_cbranch_scc1 {name}_mu")
    nmu = len(b.ins)
    for q in range(4):
        t = vTC + 2 * q
        b(f"v_cvt_pk_bf16_f32 v{t}, v{D2+4*q}, v{D2+4*q+1}")
        b(f"v_cvt_pk_bf16_f32 v{t+1}, v{D2+4*q+2}, v{D2+4*q+3}")
        b(f"ds_write_b64 v14, v[{t}:{t+1}] offset:{q*16}", tok="yw")
    sp(b, 'st2')
    b("s_barrier", needs=["yw"])
    sp(b, 'bar')
    vY = vTS
    for k in range(2):
        for rd in range(2):
            b(f"ds_read_b64_tr_b16 v[{vY+4*k+2*rd}:{vY+4*k+2*rd+1}], v15 offset:{rd*4*ESTR + 2*k*USTR}")
    for k in range(2):
        t = vA + 16 + 8 * k
        for r in range(4):
            b(f"v_dot2c_f32_bf16 v{t+2*r}, s40, v{vY+4*k+r}")
            b(f"v_dot2c_f32_bf16 v{t+2*r+1}, s41, v{vY+4*k+r}")
    for k in range(2):
        t = vA + 16 + 8 * k
        for r in range(4):
            b(f"v_cvt_pk_bf16_f32 v{vXr+4*k+r}, v{t+2*r}, v{t+2*r+1}")
        b(f"buffer_store_dwordx4 v[{vXr+4*k}:{vXr+4*k+3}], v7, s[16:19], s{37+k} offen{opt.get('stflag', '')}")
    sp(b, 'sts')
    sp.dump(b)
    gen_k2.names = sp.names
    if opt.get('rt'): rt_end(b, 1)
    b("s_endpgm")
    main = finalize(b.ins)
    m = Block()
    m("v_lshlrev_b32 v12, 7, v3")
    m("v_lshl_add_u32 v12, v4, 4, v12")
    m("s_lshl_b32 s45, s39, 12")
    m(f"s_add_u32 s46, s45, {MU_OFF - X_OFF}")
    m(f"s_add_u32 s45, s45, {MX_OFF - X_OFF}")
    for q in range(4): m(f"buffer_load_dwordx4 v[{vTC+4*q}:{vTC+4*q+3}], v12, s[12:15], s45 offen" + (f" offset:{32*q}" if q else ""))
    for i in range(16): m(f"v_sub_f32 v{D2+i}, v{D2+i}, v{vTC+i}")
    for q in range(4): m(f"buffer_store_dwordx4 v[{D2+4*q}:{D2+4*q+3}], v12, s[12:15], s46 offen" + (f" offset:{32*q}" if q else ""))
    if opt.get('rt'): rt_end(m, 1)
    m("s_endpgm")
    pre = b.ins[:nmu]
    mu = finalize(pre + m.ins)[len(finalize(pre)):]
    b = Block()
    b("s_nop 4")
    b("s_cmp_lt_u32 s2, 152")
    b(f"s_cbranch_scc1 {name}_end")
    b("s_sub_u32 s29, s2, 152")
    b("s_and_b32 s30, s29, 7")
    b("s_lshr_b32 s29, s29, 3")
    b("s_mul_i32 s31, s28, 13")
    b("s_add_u32 s29, s29, s31")
    b("v_lshlrev_b32 v2, 7, v1")
    code_srd(b, 16, code_lo, code_hi, f"{name}_pc2")
    b("s_lshl_b32 s31, s29, 13")
    b("buffer_load_dword v5, v2, s[16:19], s31 offen")
    b("s_waitcnt lgkmcnt(0)")
    t0 = opt.get('t0', 96); t1 = opt.get('t1', 0)
    if t0 < t1:
        b("v_mul_u32_u24 v6, 9216, v1")
        b("s_mul_i32 s36, s30, 1152")
        b(f"s_mov_b32 s10, {576*9216}")
        b("s_mov_b32 s11, 0x20000")
        b(f"s_add_u32 s32, s29, {t0}")
        b(f"s_cmp_ge_u32 s32, {t1}")
        b(f"s_cbranch_scc1 {name}_s3")
        b("s_mul_i32 s33, s32, 57")
        b("s_lshr_b32 s33, s33, 9")
        b("s_mul_i32 s34, s33, 9")
        b("s_sub_u32 s34, s32, s34")
        b("s_bitcmp1_b32 s33, 0")
        b("s_cselect_b32 s8, s22, s20")
        b("s_cselect_b32 s9, s23, s21")
        b("s_lshr_b32 s33, s33, 1")
        b("s_lshr_b32 s35, s33, 1")
        b("s_bitcmp1_b32 s33, 0")
        b("s_cselect_b32 s33, 5, 0")
        b("s_add_u32 s33, s33, s35")
        b("s_lshl_b32 s33, s33, 7")
        b(f"s_mul_i32 s34, s34, {64*9216}")
        b("s_add_u32 s33, s33, s34")
        b("s_add_u32 s33, s33, s36")
        b(f"buffer_load_dword v8, v6, s[8:11], s33 offen{opt.get('pf', '')}")
        b(f"{name}_s3:")
    if opt.get('pfw', 0):
        b(f"s_mul_i32 s30, s30, {576*1152}")
        b("s_add_u32 s12, s24, s30")
        b("s_addc_u32 s13, s25, 0")
        b(f"s_mov_b32 s14, {576*1152}")
        b("s_mov_b32 s15, 0x20000")
        b("s_sub_u32 s31, 103, s29")
        b("s_lshl_b32 s31, s31, 13")
        b(f"buffer_load_dword v7, v2, s[12:15], s31 offen{opt.get('pf', '')}")
    if opt.get('rt') and not opt.get('nosrt'): rt_end(b, 1)
    side = finalize(b.ins)
    txt = (khead(name) + "\n" + render(main) + f"\n{name}_mu:\n" + render(mu) + f"\n{name}_side:\n" + render(side)
           + f"\n{name}_end:\n  s_endpgm\n")
    return txt, kdesc(name, 210, 0, 102 if opt.get('rt') or opt.get('sp') else 48), K2_LDS, 256
```

```python
from asmgen import *
import os
T_OFF = 0
H_OFF = 0x240000
X_OFF = 0x480000
Z_OFF = 0x6C0000
MX_OFF = 0x6C2000
MU_OFF = 0x6C4000
ST_OFF = 0x700000
P_OFF = 0x800000
PSZ = 0x240000
SLOT = 36864
K3_LDS = 4 * SLOT

def gen_k3(name="ffn_kernel", stflag=" sc1", stamps=False, opt=None, code_end=None):
    opt = opt or {}
    code_end = code_end or f"{name}_end"
    b = Block()
    vLane = 1
    vR1 = 2
    vR3 = 4
    vR2 = 8
    vC1 = 12; vVar = 13; vSt = 14; vX = 15
    vACT = 16
    vG0 = vACT + 72
    vG1 = vG0 + 16
    vU0 = vG1 + 16
    vU1 = vU0 + 16
    vSA = vU1 + 16
    vDA = vSA + 16
    vDB = vDA + 9
    vDC = vDB + 9
    vPA = vDC + 9; vPB = vPA + 1
    vTmp = vPB + 1
    NVG = vTmp + 12
    aH = 0
    aF = 144
    NA = aF + 32
    hfrag = lambda kk: f"a[{aH+4*kk}:{aH+4*kk+3}]"
    TM = "s_memrealtime" if opt.get("rtst") else "s_memtime"
    rot = opt.get('rot', 0)
    b("s_cmp_ge_u32 s2, 256")
    b(f"s_cbranch_scc1 {name}_end")
    if opt.get('rt'): rt_begin(b)
    b("s_load_dwordx4 s[4:7], s[0:1], 48")
    b("s_load_dwordx2 s[36:37], s[0:1], 64")
    b("s_load_dwordx2 s[38:39], s[0:1], 88")
    if stamps: b(f"{TM} s[48:49]")
    b(f"v_and_b32 v{vLane}, 63, v0")
    b(f"v_lshrrev_b32 v{vX}, 6, v0")
    b(f"v_readfirstlane_b32 s28, v{vX}")
    lb = opt.get('lb', 1)
    nx = 4 - lb
    if nx >= 3:
        b("s_and_b32 s30, s2, 7")
        b("s_mov_b32 s29, 0")
    else:
        b(f"s_and_b32 s30, s2, {(1 << nx) - 1}")
        b(f"s_bfe_u32 s29, s2, {((3 - nx) << 16) | nx}")
        b(f"s_lshl_b32 s29, s29, {5 - lb}")
    b(f"s_lshl_b32 s30, s30, {lb}")
    b(f"s_bfe_u32 s31, s2, {(lb << 16) | 3}")
    b("s_or_b32 s30, s30, s31")
    b(f"s_lshr_b32 s3, s2, {3 + lb}")
    b("s_add_u32 s29, s29, s3")
    b("s_and_b32 s45, s30, 1")
    b("s_mul_i32 s31, s30, 576")
    b("s_lshl_b32 s40, s45, 6")
    b("s_add_u32 s44, s31, s40")
    b("s_xor_b32 s40, s45, 1")
    b("s_lshl_b32 s40, s40, 9")
    b("s_add_u32 s31, s31, s40")
    if rot:
        b(f"s_mul_i32 s40, s45, {288*9216}")
        b("s_add_u32 s46, s44, s40")
        b(f"s_sub_u32 s40, {288*9216}, s40")
        b("s_add_u32 s47, s44, s40")
    else:
        b("s_mov_b32 s46, s44")
        b(f"s_add_u32 s47, s44, {288*9216}")
    b("s_mul_i32 s32, s28, 9216")
    b("s_lshl_b32 s34, s29, 2")
    b("s_add_u32 s34, s34, s28")
    b("s_mul_i32 s34, s34, 36864")
    t0, t1, t2 = vTmp, vTmp + 1, vTmp + 2
    b(f"v_and_b32 v{t1}, 3, v{vLane}")
    b(f"v_lshlrev_b32 v{t1}, 4, v{t1}")
    b(f"v_lshrrev_b32 v{t2}, 5, v{vLane}")
    b(f"v_lshl_add_u32 v{t2}, v{t2}, 6, v{t1}")
    b(f"v_bfe_u32 v{t0}, v{vLane}, 2, 3")
    b(f"s_mul_i32 s40, s28, {72*9216}")
    b(f"v_mul_u32_u24 v{vDA}, 9216, v{t0}")
    b(f"v_add3_u32 v{vDA}, v{vDA}, v{t2}, s40")
    for i in range(1, 9):
        b(f"v_add_u32 v{vDA+i}, {i*8*9216 - (i%4)*1024}, v{vDA}")
    b(f"v_lshlrev_b32 v{vSt}, 4, v{vLane}")
    b("s_waitcnt lgkmcnt(0)")
    srd(b, 8, 4, 576 * 9216)
    srd(b, 20, 38, 0x800000)

    NST = 27
    def dma_list(s):
        slot = (s % 4) * SLOT
        if s < 16:
            sc, ph = s // 4, s % 4
            sr = 8 if ph < 2 else 12; vo = vDA
            first = Ins(f"s_add_u32 s41, s{46 + ph % 2}, {sc * 128}")
        elif s < 18:
            sr = 8 if s == 16 else 12; vo = vDB
            first = Ins("s_mov_b32 s41, s31")
        else:
            sr = 16; vo = vDC
            first = Ins(f"s_add_u32 s41, s33, {(s - 18) * 128}")
        l = []
        for i in range(9):
            it = [first] if i == 0 else []
            io = i % 4 if (s < 18 or i < 5) else i - 5
            if io == 0:
                it.insert(0, Ins(f"s_add_u32 m0, s32, {slot + i * 1024}"))
            off = f" offset:{io*1024}" if io else ""
            it.append(Ins(f"buffer_load_dwordx4 v{vo+i}, s[{sr}:{sr+3}], s41 offen{off}{opt.get('wf1', '') if s < 18 else opt.get('wf2', '')} lds", tok=f"dma{s}"))
            l.append(it)
        return l
    for it in dma_list(0):
        for i in it: b.add(i)
    hfl = opt.get('hflag', '')
    def hload(kk):
        l = []
        k2 = kk % 18
        if kk == 0:
            if rot: l += [Ins("s_mul_i32 s42, s45, 18432"), Ins("s_add_u32 s42, s42, s34"), Ins(f"s_add_u32 s42, s42, {H_OFF}")]
            else: l += [Ins(f"s_add_u32 s42, s34, {H_OFF}")]
        elif kk == 18:
            if rot: l += [Ins("s_mul_i32 s42, s45, 18432"), Ins("s_sub_u32 s42, s34, s42"), Ins(f"s_add_u32 s42, s42, {H_OFF + 18432}")]
            else: l += [Ins(f"s_add_u32 s42, s34, {H_OFF + 18432}")]
        elif k2 % 4 == 0:
            l.append(Ins("s_add_u32 s42, s42, 4096"))
        off = f" offset:{(k2%4)*1024}" if k2 % 4 else ""
        l.append(Ins(f"buffer_load_dwordx4 {hfrag(kk)}, v{vSt}, s[20:23], s42 offen{off}{hfl}"))
        return l
    HPRE = opt.get('hpre', 8)
    for kk in range(HPRE):
        for i in hload(kk): b.add(i)
    srd(b, 12, 6, 576 * 9216)
    srd(b, 16, 36, 4608 * 1152)
    srd(b, 24, 38, 16 * PSZ, P_OFF)
    b("s_mul_i32 s33, s30, 331776")
    b(f"s_mul_i32 s35, s30, {PSZ}")
    b("s_add_u32 s35, s35, s34")
    b(f"s_mul_i32 s40, s28, {72*1152}")
    b(f"s_mul_i32 s43, s45, {32*1152}")
    b("s_add_u32 s40, s40, s43")
    b(f"v_mul_u32_u24 v{vDC}, 1152, v{t0}")
    b(f"v_add3_u32 v{vDC}, v{vDC}, v{t2}, s40")
    b("s_cmp_eq_u32 s28, 3")
    b("s_cselect_b32 s43, s45, 0")
    b(f"s_mul_i32 s43, s43, {288*1152}")
    b(f"s_sub_u32 s43, {5*8*1152}, s43")
    for i in range(1, 5): b(f"v_add_u32 v{vDC+i}, {i*8*1152 - (i%4)*1024}, v{vDC}")
    b(f"v_add_u32 v{vDC+5}, s43, v{vDC}")
    for i in range(6, 9): b(f"v_add_u32 v{vDC+i}, {(i-5)*(8*1152 - 1024)}, v{vDC+5}")
    b(f"v_lshrrev_b32 v{t0}, 2, v{vLane}")
    if rot:
        b("s_lshl_b32 s40, s45, 1\ns_add_u32 s40, s40, s28\ns_and_b32 s40, s40, 3")
        b(f"s_mul_i32 s40, s40, {9*16*9216}")
    else:
        b(f"s_mul_i32 s40, s28, {9*16*9216}")
    b(f"v_mul_u32_u24 v{vDB}, 9216, v{t0}")
    b(f"v_add3_u32 v{vDB}, v{vDB}, v{t1}, s40")
    for i in range(1, 9):
        b(f"v_add_u32 v{vDB+i}, {i*16*9216 - (i%4)*1024}, v{vDB}")
    b(f"v_lshrrev_b32 v{t0}, 1, v{t1}")
    b(f"v_bfe_u32 v{t1}, v{vLane}, 4, 1")
    b(f"v_lshl_add_u32 v{t0}, v{t1}, 5, v{t0}")
    b(f"v_bfe_u32 v{t1}, v{vLane}, 2, 2")
    b(f"v_lshl_add_u32 v{t0}, v{t1}, 6, v{t0}")
    b(f"v_lshrrev_b32 v{t1}, 5, v{vLane}")
    b(f"v_lshl_add_u32 v{vR3}, v{t1}, 10, v{t0}")
    b(f"v_lshl_add_u32 v{vR1}, v{t1}, 9, v{t0}")
    b(f"v_lshl_add_u32 v{vR2}, v{t1}, 8, v{t0}")
    b(f"v_add_u32 v{vR1+1}, {SLOT}, v{vR1}")
    for s in range(1, 4):
        b(f"v_add_u32 v{vR3+s}, {s*SLOT}, v{vR3}")
        b(f"v_add_u32 v{vR2+s}, {s*SLOT}, v{vR2}")
    b(f"v_lshlrev_b32 v{vX}, 7, v{vLane}")
    assert lb == 1
    b("s_lshl_b32 s3, s3, 2")
    b("s_add_u32 s3, s3, s28")
    b(f"s_mul_i32 s40, s3, {9*9216}")
    b(f"v_mul_u32_u24 v{vPA}, 9216, v{vLane}")
    b(f"v_add_u32 v{vPA}, s40, v{vPA}")
    b("s_mul_i32 s40, s3, 5184")
    b(f"v_add_u32 v{vPB}, s40, v{vX}")
    b(f"v_cmp_lt_u32 vcc, 8, v{vLane}")
    b(f"v_mov_b32 v{t0}, 0x40000000")
    b(f"v_cndmask_b32 v{vPA}, v{vPA}, v{t0}, vcc")
    b(f"v_cndmask_b32 v{vPB}, v{vPB}, v{t0}, vcc")
    if opt.get('pfcode', 1):
        code_srd(b, 4, f"{name}_body", code_end, f"{name}_pc")
    b(f"{name}_body:")

    M = []
    def acc_str(r): return f"v[{r}:{r+15}]"
    stage_start = {}; done = {}; first = {}
    CS0 = opt.get('cs0', 6)
    hpos = {}
    for s in range(16):
        sc, ph = s // 4, s % 4
        isu, hi = ph >= 2, ph % 2
        stage_start[s] = len(M)
        order = [(ct, kk) for ct in range(2) for kk in range(18)]
        if s < 2: order = [(ct, kk) for kk in range(18) for ct in range(2)]
        for n, (ct, kk) in enumerate(order):
            ch = 2 * sc + ct
            acc = [[vG0, vG1], [vU0, vU1]][isu][ct]
            if not hi and kk == 0: first[('GU'[isu], ch)] = len(M)
            M.append(dict(acc=acc, rd=(vR3 + s % 4, kk * 2048 + ct * 512, kk * 2048 + ct * 512 + 256),
                          b=hfrag(18 * hi + kk), c0=(kk == 0 and not hi), stage=s))
            if s < 2 and ct == 1: hpos[18 * hi + kk] = len(M) - 1
            if hi and kk == 17: done[('GU'[isu], ch)] = len(M) - 1
    for s in (16, 17):
        stage_start[s] = len(M)
        acc = vG0 if s == 16 else vU0
        first[('GU'[s - 16], 8)] = len(M)
        for kk in range(36):
            M.append(dict(acc=acc, rd=(vR1 + s - 16, kk * 1024, kk * 1024 + 256), b=hfrag(kk), c0=(kk == 0), stage=s))
        done[('GU'[s - 16], 8)] = len(M) - 1
    chain_last = {}
    oacc = lambda tile: vG1 if tile % 2 == 0 else vU1
    for s in range(18, NST):
        stage_start[s] = len(M)
        for ct in range(2):
            tile = 2 * (s - 18) + ct
            for kk in range(18):
                M.append(dict(acc=oacc(tile), rd=(vR2 + s % 4, kk * 2048 + ct * 512, kk * 2048 + 1024 + ct * 512),
                              b=f"v[{vACT+4*kk}:{vACT+4*kk+3}]", c0=(kk == 0), stage=s))
            chain_last[tile] = len(M) - 1
    NM = len(M)
    gaps = [[] for _ in range(NM + 1)]
    cost = [0] * (NM + 1)
    def put(g, inss, c=None):
        g = min(g, NM - 1)
        if not isinstance(inss, list): inss = [inss]
        gaps[g + 1].extend(inss)
        for i in inss:
            cost[g + 1] += (8 if i.kind == 'trans' else 4) if c is None else c
    R = [g for g in range(NM) if M[g]['rd'] is not None]
    LA = opt.get('la', 6)
    BARL = opt.get('barl', 4)
    bar_pos = {s: stage_start[s] - BARL for s in range(1, NST)}
    bar_pos[0] = -1
    for s in range(NST):
        needs = [f"dma{s}"] + ([f"rd{g}" for g in R if M[g]['stage'] == s - 1] if s else [])
        if stamps and s >= 1 and not opt.get('fine'):
            put(bar_pos[s] - 2, Ins(f"{TM} s[{48+2*s}:{49+2*s}]", tok=f"st{s}"))
            needs = needs + [f"st{s}"]
        put(bar_pos[s], [Ins("s_barrier", needs=needs)], 8)
    if stamps and opt.get('fine'):
        for k in range(1, 27):
            put(-1 + 4 * (k - 1), [Ins(f"{TM} s[{48+2*k}:{49+2*k}]"), Ins("s_waitcnt lgkmcnt(0)")])
    nrd = {}
    for n, g in enumerate(R):
        buf = aF + 4 * (n % 8)
        M[g]['a'] = f"a[{buf}:{buf+3}]"
        base, o0, o1 = M[g]['rd']
        p = R[n - LA] if n >= LA else -1
        p = max(p, bar_pos[M[g]['stage']])
        while nrd.get(p, 0) >= (2 if p not in bar_pos.values() else (1 if p >= 0 else 4)): p += 1
        assert p < g, (g, p)
        if n >= 8: assert p >= R[n - 8], (g, p)
        nrd[p] = nrd.get(p, 0) + 1
        M[g]['rp'] = p
        put(p, [Ins(f"ds_read_b64_tr_b16 a[{buf}:{buf+1}], v{base} offset:{o0}", tok=f"rd{g}"),
                Ins(f"ds_read_b64_tr_b16 a[{buf+2}:{buf+3}], v{base} offset:{o1}", tok=f"rd{g}")])
    seq = []
    d1, d2, d3 = dma_list(1), dma_list(2), dma_list(3)
    hs = [hload(kk) for kk in range(HPRE, 36)]
    n1 = 18 - HPRE + opt.get('hx', 2)
    a_, rest = hs[:n1], hs[n1:]
    while a_ or d1:
        if a_: seq.append(a_.pop(0))
        if d1: seq.append(d1.pop(0))
    while rest or d2:
        for _ in range(2):
            if rest: seq.append(rest.pop(0))
        if d2: seq.append(d2.pop(0))
    seq += d3
    for k, it in enumerate(seq): put(k - 1, it)
    prev_end = len(seq)
    DSTEP = opt.get('dstep', 3)
    for s in range(4, NST):
        items = dma_list(s)
        g0 = max(bar_pos[s - 3] + 5, prev_end + 2)
        step = DSTEP if s > 5 else 2
        for k, it in enumerate(items):
            if opt.get('nodma'): continue
            put(g0 + k * step - 1, it[:-1]); put(g0 + k * step, it[-1:])
        prev_end = g0 + 8 * step
        assert prev_end < bar_pos[s] - 8, (s, prev_end, bar_pos[s])
    dummy = vTmp + 9
    if opt.get('pfwd', 1):
        todo = []
        for sc in range(opt.get('pf0', 2), 4): todo += [(8, vPA, 's44', sc * 128), (12, vPA, 's44', sc * 128)]
        todo += [(8, vPA, 's31', 0), (12, vPA, 's31', 0)]
        for k in range(5): todo.append((16, vPB, 's33', k * 1152))
        for k, (sr, vo, sb, c) in enumerate(todo):
            g = bar_pos[opt.get('pfst', 3) + k] - opt.get('pfg', 3)
            put(g - 1, Ins(f"s_add_u32 s3, {sb}, {c}"))
            put(g, Ins(f"buffer_load_dword v{dummy+(k&1)}, v{vo}, s[{sr}:{sr+3}], s3 offen{opt.get('pff', '')}"))
    if opt.get('pfcode', 1):
        for rnd, st in enumerate(opt.get('pfcs', (4, 12))):
            g = bar_pos[st] + 2
            put(g - 4, [Ins("s_lshl_b32 s40, s28, 13"), Ins(f"s_add_u32 s40, s40, {opt.get('pfco', (4096, 16384))[rnd]}")])
            put(g, Ins(f"buffer_load_dword v{dummy+2}, v{vX}, s[4:7], s40 offen"))
    def spread(inss, g_lo, g_hi):
        tot = sum(8 if i.kind == 'trans' else 4 for i in inss)
        base = sum(cost[g + 1] for g in range(g_lo, g_hi + 1))
        level = (tot + base) / (g_hi - g_lo + 1)
        g = g_lo; carry = 0.0
        for i in inss:
            c = 8 if i.kind == 'trans' else 4
            while g < g_hi and cost[g + 1] + c > level + carry + 2:
                carry += level - cost[g + 1]
                g += 1
            put(g, i)
    for kk in range(36):
        if opt.get('nostats'): break
        l = []
        for j in range(2):
            hr = f"a[{aH+4*kk+2*j}:{aH+4*kk+2*j+1}]"
            acc = vSA + 4 * j
            c = "0" if kk == 0 else f"v[{acc}:{acc+3}]"
            l.append(Ins(f"v_mfma_f32_4x4x4_16b_bf16 v[{acc}:{acc+3}], {hr}, {hr}, {c}"))
        put(hpos[kk], l, 8)
    u1, vQ0 = vTmp + 1, vTmp + 3
    fin = [Ins("s_mov_b32 vcc_lo, 0xaaaaaaaa"), Ins("s_mov_b32 vcc_hi, 0xaaaaaaaa")]
    for i in range(4): fin.append(Ins(f"v_add_f32 v{vSA+i}, v{vSA+i}, v{vSA+4+i}"))
    fin += [Ins(f"v_cndmask_b32 v{vSA}, v{vSA}, v{vSA+1}, vcc"), Ins(f"v_cndmask_b32 v{vSA+2}, v{vSA+2}, v{vSA+3}, vcc"),
            Ins("s_mov_b32 vcc_lo, 0xcccccccc"), Ins("s_mov_b32 vcc_hi, 0xcccccccc"),
            Ins(f"v_cndmask_b32 v{vQ0}, v{vSA}, v{vSA+2}, vcc"),
            Ins(f"v_mov_b32 v{u1}, v{vQ0}"),
            Ins(f"v_mov_b32 v{vVar}, 0x3727c5ac"),
            Ins(f"v_permlane32_swap_b32 v{u1}, v{vQ0}"),
            Ins(f"v_add_f32 v{vQ0}, v{u1}, v{vQ0}"),
            Ins(f"v_fmac_f32 v{vVar}, 0x3ae38e39, v{vQ0}"),
            Ins(f"v_rsq_f32 v{vC1}, v{vVar}"),
            Ins(f"v_mul_f32 v{vC1}, 0xbfb8aa3b, v{vC1}")]
    spread(fin, stage_start[2], stage_start[2] + CS0 - 1)
    def w1(G):
        l = []
        for e0 in range(0, 16, 4):
            T = vTmp + (e0 & 4)
            for e in range(4): l.append(Ins(f"v_mul_f32 v{T+e}, v{G+e0+e}, v{vC1}"))
            for e in range(4): l.append(Ins(f"v_exp_f32 v{T+e}, v{T+e}"))
            for e in range(4): l.append(Ins(f"v_fma_f32 v{T+e}, v{T+e}, v{vVar}, v{vVar}"))
            for e in range(4): l.append(Ins(f"v_rcp_f32 v{T+e}, v{T+e}"))
            for e in range(4): l.append(Ins(f"v_mul_f32 v{G+e0+e}, v{G+e0+e}, v{T+e}"))
        return l
    def w2(ch, G, U):
        l = []
        for e0 in range(0, 16, 4):
            for e in range(e0, e0 + 4): l.append(Ins(f"v_mul_f32 v{U+e}, v{G+e}, v{U+e}"))
            for e in (e0, e0 + 2): l.append(Ins(f"v_cvt_pk_bf16_f32 v{vACT + 8*ch + e//2}, v{U+e}, v{U+e+1}"))
        return l
    if not opt.get('novalu'):
        for sc in range(4):
            c0, c1 = 2 * sc, 2 * sc + 1
            endsc = done[('U', c1)]
            spread(w2(c0, vG0, vU0), done[('U', c0)] + 3, endsc - 1)
            ext = 8 if sc == 0 else 3
            lim1 = (first[('G', c1 + 2)] - 2) if sc < 3 else endsc + 30
            spread(w2(c1, vG1, vU1), endsc + ext + 1, lim1)
            lo = done[('G', c0)] + 4
            if sc == 0:
                lo = stage_start[2] + CS0
                mid = lo + 33
            else: mid = max(done[('G', c1)] + 3, lo + opt.get('w1len', 41))
            assert mid < done[('U', c0)] + 3
            spread(w1(vG0), lo, mid)
            spread(w1(vG1), mid + 1, endsc + ext)
        spread(w1(vG0), done[('G', 8)] + 3, done[('U', 8)] + 3)
        spread(w2(8, vG0, vU0), done[('U', 8)] + 4, done[('U', 8)] + 14)
    tail = []
    for tile in range(18):
        acc = oacc(tile)
        pk = vSA + 8 * (tile % 2)
        l = []
        if tile % 2 == 0:
            l.append(Ins(f"s_add_u32 s43, s35, {tile * 2048}"))
        for hlf in range(2):
            for e in range(4):
                l.append(Ins(f"v_cvt_pk_bf16_f32 v{pk + 4*hlf + e}, v{acc + 8*hlf + 2*e}, v{acc + 8*hlf + 2*e + 1}"))
            o = (tile % 2) * 2048 + hlf * 1024
            off = f" offset:{o}" if o else ""
            l.append(Ins(f"buffer_store_dwordx4 v[{pk+4*hlf}:{pk+4*hlf+3}], v{vSt}, s[24:27], s43 offen{off}{stflag}"))
        if tile < 17:
            lo = chain_last[tile] + 3
            spread(l, lo, lo + 10)
        else:
            tail = l
    for i in gaps[0]: b.add(i)
    for g in range(NM):
        m = M[g]
        needs = []
        if g + 1 < NM and M[g + 1]['rd'] is not None and g % 2 == 0 and M[g + 1]['rp'] <= g - 3:
            needs = [f"rd{g+1}"]
        c = "0" if m['c0'] else acc_str(m['acc'])
        b(f"v_mfma_f32_32x32x16_bf16 {acc_str(m['acc'])}, {m['a']}, {m['b']}, {c}", needs=needs)
        for i in gaps[g + 1]: b.add(i)
    for i in tail: b.add(i)
    if stamps:
        b(f"{TM} s[36:37]")
        b("s_waitcnt vmcnt(0)")
        b(f"{TM} s[38:39]")
        b("s_waitcnt lgkmcnt(0)")
        b("v_mov_b32 v16, 0")
        for k in range(27): b(f"v_writelane_b32 v16, s{48+2*k}, {k}")
        b("v_writelane_b32 v16, s36, 27")
        b("v_writelane_b32 v16, s38, 28")
        b("s_lshl_b32 s42, s2, 4\ns_add_u32 s42, s42, s28\ns_lshl_b32 s42, s42, 7")
        b(f"s_add_u32 s42, s42, {ST_OFF}")
        b(f"v_lshlrev_b32 v20, 2, v{vLane}")
        b("s_mov_b32 exec_hi, 0")
        b("buffer_store_dword v16, v20, s[20:23], s42 offen")
        gen_k3.names = ['start'] + [f's{k}' for k in range(1, 27)] + ['e0', 'e1']
    if opt.get('rt'): rt_end(b, 2)
    ins = finalize(b.ins, opt.get('verbose', False))
    txt = khead(name) + "\n" + render(ins) + f"\n{name}_end:\n  s_endpgm\n"
    gen_k3.cost = cost
    return txt, kdesc(name, NVG, NA, 102), K3_LDS, max(cost)

def write_k3(path, **kw):
    txt, desc, lds, mc = gen_k3(**kw)
    o = [f"; @launch kernel=ffn_kernel grid=(256,1,1) block=(256,1,1) lds={lds}",
         '.amdgcn_target "amdgcn-amd-amdhsa--gfx950"', ".text", txt, '.section .rodata,"a"', desc]
    open(path, "w").write("\n".join(o) + "\n")
if __name__ == "__main__":
    write_k3("k3.s", stamps=True, opt=dict(verbose=True))
    print(gen_k3.cost[:260])
```

```python
from asmgen import *
from k3 import H_OFF, P_OFF, PSZ, MU_OFF

def gen_k5(name="red_kernel", NP=8, opt=None):
    opt = opt or {}
    b = Block()
    b("s_cmp_ge_u32 s2, 256")
    b(f"s_cbranch_scc1 {name}_end")
    if opt.get('rt'): rt_begin(b)
    b("s_load_dwordx2 s[4:5], s[0:1], 72")
    b("s_load_dwordx2 s[6:7], s[0:1], 88")
    b("v_and_b32 v1, 63, v0")
    b("v_lshrrev_b32 v2, 6, v0")
    b("v_readfirstlane_b32 s28, v2")
    b("s_and_b32 s29, s2, 7")
    b("s_lshl_b32 s29, s29, 3")
    b("s_bfe_u32 s30, s2, 0x30003")
    b("s_or_b32 s29, s29, s30")
    b("s_lshr_b32 s30, s2, 6")
    b("s_mul_i32 s30, s30, 9")
    b("s_add_u32 s30, s30, s28")
    b("s_mul_i32 s31, s29, 36864")
    b("s_lshl_b32 s32, s30, 10")
    b("s_add_u32 s31, s31, s32")
    b("v_lshlrev_b32 v3, 4, v1")
    b("s_waitcnt lgkmcnt(0)")
    srd(b, 8, 6, NP * PSZ, P_OFF)
    srd(b, 12, 6, 0x800000)
    srd(b, 16, 4, 2048 * 1152)
    vP = 16
    b("s_mov_b32 s33, s31")
    ld = opt.get('ldflag', '')
    for p in range(NP):
        b(f"buffer_load_dwordx4 v[{vP+4*p}:{vP+4*p+3}], v3, s[8:11], s33 offen{ld}")
        if p < NP - 1: b(f"s_add_u32 s33, s33, {PSZ}")
    vHh = vP + 4 * NP
    b(f"s_add_u32 s31, s31, {H_OFF}")
    b(f"buffer_load_dwordx4 v[{vHh}:{vHh+3}], v3, s[12:15], s31 offen")
    b("v_and_b32 v6, 31, v1")
    b("v_lshlrev_b32 v6, 2, v6")
    b("s_lshl_b32 s33, s29, 7")
    b(f"s_add_u32 s33, s33, {MU_OFF}")
    b("buffer_load_dword v7, v6, s[12:15], s33 offen")
    b("v_and_b32 v4, 31, v1")
    b("s_mov_b32 s34, 73728")
    b("v_mul_lo_u32 v4, v4, s34")
    b("v_lshrrev_b32 v5, 5, v1")
    b("v_lshl_add_u32 v4, v5, 4, v4")
    b("s_mul_i32 s34, s29, 1152")
    b("s_lshl_b32 s35, s30, 5")
    b("s_add_u32 s34, s34, s35")
    b("s_mov_b32 s36, 0x00003f80")
    b("s_mov_b32 s37, 0x3f800000")
    S = 8
    for r in range(4):
        b(f"v_lshlrev_b32 v{S+2*r}, 16, v{vP+r}")
        b(f"v_and_b32 v{S+2*r+1}, 0xffff0000, v{vP+r}")
    for p in range(1, NP):
        for r in range(4):
            b(f"v_dot2c_f32_bf16 v{S+2*r}, s36, v{vP+4*p+r}")
            b(f"v_dot2c_f32_bf16 v{S+2*r+1}, s37, v{vP+4*p+r}")
    for i in range(4):
        b(f"v_permlane32_swap_b32 v{S+i}, v{S+4+i}")
    for r in range(4):
        b(f"v_dot2c_f32_bf16 v{S+2*r}, s36, v{vHh+r}")
        b(f"v_dot2c_f32_bf16 v{S+2*r+1}, s37, v{vHh+r}")
    for i in range(8):
        b(f"v_add_f32 v{S+i}, v{S+i}, v7")
    for r in range(4):
        b(f"v_cvt_pk_bf16_f32 v{vP+r}, v{S+2*r}, v{S+2*r+1}")
    b(f"buffer_store_dwordx4 v[{vP}:{vP+3}], v4, s[16:19], s34 offen")
    if opt.get('rt'): rt_end(b, 3)
    ins = finalize(b.ins)
    txt = khead(name) + "\n" + render(ins) + f"\n{name}_end:\n  s_endpgm\n"
    return txt, kdesc(name, vHh + 4, 0, 102 if opt.get('rt') else 48), 0
```

```python
from asmgen import *
from k3 import T_OFF, X_OFF, Z_OFF, MX_OFF, FL_OFF
import struct
def fl(x): return hex(struct.unpack('<I', struct.pack('<f', x))[0])
K1_LDS = 86016
XL = 73728

def gen_k1(name="hid_kernel", opt=None, code_lo="fft_kernel", code_hi="red_kernel_end"):
    opt = opt or {}
    NMAIN = 192
    LA = opt.get('la', 3)
    NB = opt.get('nb', 3)
    sp = Stamps(opt.get('sp'), 0)
    h = Block()
    h("s_cmp_ge_u32 s2, 256")
    h(f"s_cbranch_scc1 {name}_end")
    if opt.get('rt'): rt_begin(h)
    sp(h, 'start')
    h("s_load_dwordx2 s[4:5], s[0:1], 0")
    h("s_load_dwordx2 s[6:7], s[0:1], 88")
    h("s_load_dwordx4 s[24:27], s[0:1], 48")
    if opt.get('own', 1):
        code_srd(h, 16, f"{name}_pc", f"{name}_end", f"{name}_pc")
        h("v_lshlrev_b32 v2, 7, v0")
        h("buffer_load_dword v3, v2, s[16:19], 0 offen")
    h("v_and_b32 v1, 63, v0")
    h("v_lshrrev_b32 v4, 6, v0")
    h("v_readfirstlane_b32 s28, v4")
    h(f"s_cmp_ge_u32 s2, {NMAIN}")
    h(f"s_cbranch_scc1 {name}_side")
    h("s_and_b32 s29, s2, 7")
    h("s_lshl_b32 s29, s29, 2")
    h("s_bfe_u32 s31, s2, 0x20003")
    h("s_or_b32 s29, s29, s31")
    h("s_lshr_b32 s30, s2, 5")
    h("v_and_b32 v12, 31, v1")
    h("v_lshrrev_b32 v13, 5, v1")
    h("v_bfe_u32 v14, v1, 1, 3")
    h("v_xor_b32 v14, v14, v13")
    h("v_lshlrev_b32 v14, 4, v14")
    vA = 16
    h(f"v_lshl_add_u32 v{vA}, v12, 7, v14")
    for ks in range(1, 4): h(f"v_xor_b32 v{vA+ks}, {32*ks}, v{vA}")
    h("s_mov_b32 s44, 0x3f803f80")
    h("s_cmp_lg_u32 s28, 3")
    h(f"s_cbranch_scc1 {name}_main")
    vFr = 64
    per = 36 // NB
    def kloop(b, work):
        def rd(s):
            if s % per == 0:
                b("s_barrier", needs=[f"d{B}" for B in range(9) if 4 * B < s + per])
                if b.main: sp(b, f'bar{s // per}')
            if s == 16:
                for ks in range(4): b(f"v_add_u32 v{vA+ks}, 32768, v{vA+ks}")
            B, ks = s // 4, s % 4
            o = B * 8192 - (32768 if s >= 16 else 0)
            for rg in range(2):
                r = vFr + 8 * (s % 4) + 4 * rg
                b(f"ds_read_b128 v[{r}:{r+3}], v{vA+ks} offset:{o + rg * 4096}")
        for s in range(LA): rd(s)
        for s in range(36):
            work(s)
            if s + LA < 36: rd(s + LA)
    b = Block(); b.main = True
    vW = 96
    vC = [240, 248]
    vK = 28; vS = 30
    b("s_mul_i32 s32, s30, 3")
    b("s_add_u32 s32, s32, s28")
    b("s_lshl_b32 s38, s32, 5")
    b("v_add_u32 v8, s38, v12")
    b("v_subrev_u32 v6, 288, v8")
    b("v_cmp_lt_u32 vcc, 288, v8")
    b("v_cndmask_b32 v5, v8, v6, vcc")
    b("v_cvt_f32_u32 v5, v5")
    b(f"v_mov_b32 v6, {fl(0.25)}")
    b("v_cndmask_b32 v6, 0, v6, vcc")
    b(f"v_mul_f32 v7, {fl(1/36)}, v5")
    b(f"v_mul_f32 v5, {fl(1/576)}, v5")
    b(f"v_cos_f32 v{vK}, v7")
    b("v_cvt_f32_u32 v7, v13")
    b(f"v_mul_f32 v7, {fl(8.0)}, v7")
    b("v_fmac_f32 v6, v5, v7")
    b(f"v_add_f32 v{vK}, v{vK}, v{vK}")
    b(f"v_mov_b32 v{vS}, 0")
    b(f"v_cndmask_b32 v{vS}, -1.0, v{vS}, vcc")
    b(f"v_mov_b32 v9, {fl(-1.25)}")
    for nn in (64, 128, 256):
        b(f"v_cmp_eq_u32 vcc, {nn}, v8")
        b(f"v_cndmask_b32 v{vS}, v{vS}, v9, vcc")
    b(f"v_mov_b32 v9, {fl(575.0)}")
    b("v_cmp_eq_u32 vcc, 0, v8")
    b(f"v_cndmask_b32 v{vS}, v{vS}, v9, vcc")
    b("v_cmp_gt_u32 vcc, 32, v1")
    b("v_mov_b32 v7, 0xffff0000")
    b("v_cndmask_b32 v7, -1, v7, vcc")
    def gen(kk):
        l = []
        c = vC[kk % 2]
        if kk % 18 < 2:
            for j in range(8): l.append(f"v_fmamk_f32 v{c+j}, v5, {fl(float(16*kk + j))}, v6")
            for j in range(8): l.append(f"v_cos_f32 v{c+j}, v{c+j}")
        else:
            p = vC[1 - kk % 2]
            if opt.get('pk', 1):
                for r in range(4):
                    l.append(f"v_pk_fma_f32 v[{c+2*r}:{c+2*r+1}], v[{p+2*r}:{p+2*r+1}], v[{vK}:{vK+1}], v[{c+2*r}:{c+2*r+1}] op_sel_hi:[1,0,1] neg_lo:[0,0,1] neg_hi:[0,0,1]")
            else:
                for j in range(8): l.append(f"v_fma_f32 v{c+j}, v{p+j}, v{vK}, -v{c+j}")
        for r in range(4): l.append(f"v_cvt_pk_bf16_f32 v{vW+4*kk+r}, v{c+2*r}, v{c+2*r+1}")
        if kk == 0: l.append(f"v_and_b32 v{vW}, v7, v{vW}")
        return l
    NG = opt.get('ng', 32)
    for kk in range(NG):
        for t in gen(kk): b(t)
    b("s_waitcnt lgkmcnt(0)")
    srd(b, 12, 6, 576 * 4096, T_OFF)
    b("v_lshlrev_b32 v11, 4, v13")
    b(f"v_add_u32 v11, {XL}, v11")
    b("v_lshlrev_b32 v10, 12, v12")
    b("v_lshl_add_u32 v10, v13, 4, v10")
    b("s_lshl_b32 s46, s32, 17")
    b("s_lshl_b32 s47, s29, 7")
    b("s_add_u32 s46, s46, s47")
    sp(b, 'gen')
    vAcc = [32, 48]
    def work(s):
        l = gen(s + NG) if s + NG < 36 else []
        for rg in range(2):
            r = vFr + 8 * (s % 4) + 4 * rg
            a = f"v[{vAcc[rg]}:{vAcc[rg]+15}]"
            b(f"v_mfma_f32_32x32x16_bf16 {a}, v[{r}:{r+3}], v[{vW+4*s}:{vW+4*s+3}], {'0' if s == 0 else a}")
            for t in (l[:len(l)//2] if rg == 0 else l[len(l)//2:]): b(t)
    kloop(b, work)
    sp(b, 'cmp')
    b("s_barrier")
    vM = vW
    for rg in range(2):
        for q in range(8): b(f"ds_read_b128 v[{vM+32*rg+4*q}:{vM+32*rg+4*q+3}], v11 offset:{256*rg + 32*q}")
    for rg in range(2):
        A, Mm, Rr, O = vAcc[rg], vM + 32 * rg, vM + 32 * rg + 16, vFr + 8 * rg
        for i in range(16): b(f"v_fmac_f32 v{A+i}, v{Mm+i}, v{vS}")
        for hf in range(2):
            for i in range(8 * hf, 8 * hf + 8): b(f"v_mul_f32 v{A+i}, v{A+i}, v{Rr+i}")
            for i in range(4 * hf, 4 * hf + 4): b(f"v_cvt_pk_bf16_f32 v{O+i}, v{A+2*i}, v{A+2*i+1}")
            o = 64 * rg + 32 * hf
            b(f"buffer_store_dwordx4 v[{O+4*hf}:{O+4*hf+3}], v10, s[12:15], s46 offen" + (f" offset:{o}" if o else ""))
    sp(b, 'sts')
    sp.dump(b)
    gen_k1.names = sp.names
    if opt.get('rt'): rt_end(b, 0)
    b("s_endpgm")
    nh = len(finalize(h.ins))
    main = finalize(h.ins + b.ins)[nh:]
    b = Block(); b.main = False
    b("v_lshrrev_b32 v5, 3, v1")
    b("s_mov_b32 s37, 73728")
    b("v_mul_lo_u32 v5, v5, s37")
    b("v_lshrrev_b32 v6, 4, v1")
    b("v_and_b32 v7, 7, v1")
    b("v_xor_b32 v6, v6, v7")
    b("v_lshlrev_b32 v6, 4, v6")
    b("v_xor_b32 v7, 64, v6")
    b("v_add_u32 v8, v5, v6")
    b(f"v_add_u32 v9, {8*73728 - 1024}, v5")
    b("v_add_u32 v9, v9, v7")
    b(f"v_add_u32 v10, {16*73728 - 2048}, v8")
    b(f"v_add_u32 v11, {16*73728 - 2048}, v9")
    b("s_mul_i32 s33, s29, 2304")
    b("s_waitcnt lgkmcnt(0)")
    srd(b, 8, 4, 2048 * 1152)
    b("s_mov_b32 m0, 0")
    b("s_add_u32 s34, s33, 1152")
    b(f"{name}_ld:")
    for rg in range(2):
        for i in range(4):
            off = f" offset:{i*1024}" if i else ""
            b(f"buffer_load_dwordx4 v{8+i}, s[8:11], s{33+rg} offen{off}{opt.get('xf', ' nt')} lds", tok='uncounted')
        b("s_add_u32 m0, m0, 4096")
        b(f"s_add_u32 s{33+rg}, s{33+rg}, 128")
    b("s_cmp_lt_u32 m0, 73728")
    b(f"s_cbranch_scc1 {name}_ld")
    for B in range(9): b.phantom(f"d{B}", 8)
    srd(b, 12, 6, 0x240000, X_OFF)
    srd(b, 16, 6, 0x4000, Z_OFF)
    b(f"s_mul_i32 s35, s29, {2*36864}")
    b("s_mul_i32 s37, s30, 6144")
    b("s_add_u32 s35, s35, s37")
    b("s_add_u32 s37, s35, 36864")
    vS = 32; vQ = 96; vOne = 30
    b(f"v_mov_b32 v{vOne}, s44\nv_mov_b32 v{vOne+1}, s44")
    b("v_lshlrev_b32 v15, 4, v1")
    b("v_lshrrev_b32 v5, 4, v12")
    b("v_lshlrev_b32 v5, 5, v5")
    b("v_bfe_u32 v6, v12, 2, 1")
    b("v_lshl_add_u32 v5, v6, 4, v5")
    b("v_bfe_u32 v6, v12, 3, 1")
    b("v_lshl_add_u32 v5, v6, 3, v5")
    b("v_and_b32 v6, 3, v12")
    b("v_lshl_add_u32 v5, v6, 1, v5")
    b("v_lshlrev_b32 v6, 2, v12")
    b(f"v_add_u32 v7, {XL}, v6")
    b("s_cmp_eq_u32 s30, 0")
    b("s_cselect_b32 s38, 0, 0x10000")
    b("s_lshl_b32 s39, s29, 7")
    b("s_add_u32 s39, s39, s38")
    b("s_lshl_b32 s40, s29, 8")
    b("s_add_u32 s40, s40, s38")
    b(f"s_add_u32 s40, s40, {MX_OFF - Z_OFF}")
    def swork(s):
        for rg in range(2):
            r = vFr + 8 * (s % 4) + 4 * rg
            if s == 0: b(f"v_lshlrev_b32 v{vS+8+rg}, 16, v{r}")
            for j in range(2):
                hr = f"v[{r+2*j}:{r+2*j+1}]"
                for w_, a in ((0, f"v[{vOne}:{vOne+1}]"), (1, hr)):
                    acc = vQ + 16 * rg + 8 * w_ + 4 * j
                    b(f"v_mfma_f32_4x4x4_16b_bf16 v[{acc}:{acc+3}], {a}, {hr}, {'0' if s == 0 else f'v[{acc}:{acc+3}]'}")
    kloop(b, swork)
    b("s_mov_b32 vcc_lo, 0xaaaaaaaa\ns_mov_b32 vcc_hi, 0xaaaaaaaa")
    b("s_mov_b32 s46, 0xcccccccc\ns_mov_b32 s47, 0xcccccccc")
    for rg in range(2):
        q = vQ + 16 * rg
        b(f"v_add_f32 v{vS+4*rg}, v{q}, v{q+4}")
        for i in range(4): b(f"v_add_f32 v{q+8+i}, v{q+8+i}, v{q+12+i}")
    for rg in range(2):
        q = vQ + 16 * rg
        b(f"v_cndmask_b32 v{q+8}, v{q+8}, v{q+9}, vcc")
        b(f"v_cndmask_b32 v{q+10}, v{q+10}, v{q+11}, vcc")
    for rg in range(2):
        q = vQ + 16 * rg
        b(f"v_cndmask_b32 v{vS+4*rg+2}, v{q+8}, v{q+10}, s[46:47]")
    for rg in range(2):
        for r in (0, 2): b(f"v_mov_b32 v{vS+4*rg+r+1}, v{vS+4*rg+r}")
    for rg in range(2):
        for r in (0, 2): b(f"v_permlane32_swap_b32 v{vS+4*rg+r+1}, v{vS+4*rg+r}")
    for rg in range(2):
        for r in (0, 2): b(f"v_add_f32 v{vS+4*rg+r}, v{vS+4*rg+r}, v{vS+4*rg+r+1}")
    for f in ["v_mul_f32 v{m}, 0xbae38e39, v{m}", "v_mul_f32 v{q}, 0x3ae38e39, v{q}", "v_fma_f32 v{q}, -v{m}, v{m}, v{q}",
              "v_max_f32 v{q}, 0, v{q}", "v_add_f32 v{q}, 0x3727c5ac, v{q}", "v_rsq_f32 v{q}, v{q}"]:
        for rg in range(2): b(f.format(m=vS + 4 * rg, q=vS + 4 * rg + 2))
    for rg in range(2):
        b(f"ds_write2_b32 v7, v{vS+4*rg}, v{vS+4*rg+2} offset0:{64*rg} offset1:{64*rg+32}", tok="sw")
    b("s_barrier", needs=["sw"])
    b("s_mul_i32 s41, s30, 6")
    b(f"v_subrev_u32 v{vA}, 32768, v{vA}")
    for i in range(6):
        b(f"s_add_u32 s42, s41, {i}")
        b("s_and_b32 s43, s42, 3")
        b("s_lshl_b32 s43, s43, 5")
        b("s_lshr_b32 s42, s42, 2")
        b("s_lshl_b32 s42, s42, 13")
        b(f"v_xor_b32 v{vA+1}, s43, v{vA}")
        b(f"v_add_u32 v{vA+1}, s42, v{vA+1}")
        for rg in range(2):
            r = 128 + 8 * i + 4 * rg
            b(f"ds_read_b128 v[{r}:{r+3}], v{vA+1} offset:{rg*4096}")
    for i in range(6):
        if i == 4: b("s_add_u32 s35, s35, 4096\ns_add_u32 s37, s37, 4096")
        off = f" offset:{(i%4)*1024}" if i % 4 else ""
        for rg in range(2):
            r = 128 + 8 * i + 4 * rg
            b(f"buffer_store_dwordx4 v[{r}:{r+3}], v15, s[12:15], s{35 + 2*rg} offen{off}")
    b("s_mov_b32 exec_hi, 0")
    for rg in range(2):
        b(f"v_add_f32 v{vS+8+rg}, v{vS+8+rg}, v{vS+4*rg}")
    for rg in range(2):
        b(f"v_mul_f32 v{vS+8+rg}, v{vS+8+rg}, v{vS+4*rg+2}")
    for rg in range(2):
        b(f"v_cvt_pk_bf16_f32 v{vS+8+rg}, v{vS+8+rg}, v{vS+8+rg}")
        b(f"buffer_store_short v{vS+8+rg}, v5, s[16:19], s39 offen" + (" offset:64" if rg else ""))
        b(f"buffer_store_dword v{vS+4*rg}, v6, s[16:19], s40 offen" + (" offset:128" if rg else ""))
    if opt.get('rt'): rt_end(b, 0)
    b("s_endpgm")
    stat = finalize(h.ins + b.ins)
    b = Block()
    b("v_lshlrev_b32 v2, 7, v1")
    b("s_sub_u32 s29, s2, 192")
    b("s_and_b32 s30, s29, 7")
    b("s_lshr_b32 s29, s29, 3")
    b("s_lshl_b32 s29, s29, 2")
    b("s_add_u32 s29, s29, s28")
    code_srd(b, 16, code_lo, code_hi, f"{name}_pc2")
    b("s_lshl_b32 s31, s29, 13")
    b("buffer_load_dword v5, v2, s[16:19], s31 offen")
    b("s_waitcnt lgkmcnt(0)")
    srd(b, 12, 6, 32768, FL_OFF)
    b("v_lshlrev_b32 v10, 7, v0")
    b("v_mov_b32 v11, 0")
    b("s_sub_u32 s36, s2, 192")
    b("s_lshl_b32 s36, s36, 15")
    b("buffer_store_dword v11, v10, s[12:15], s36 offen")
    npf = opt.get('pfw', 1)
    if npf:
        b("v_mul_u32_u24 v6, 9216, v1")
        b("s_mul_i32 s30, s30, 1152")
        b("s_waitcnt lgkmcnt(0)")
        b(f"s_mov_b32 s10, {576*9216}")
        b("s_mov_b32 s11, 0x20000")
        for k in range(npf):
            b(f"s_add_u32 s32, s29, {32*k}")
            b("s_mul_i32 s33, s32, 57")
            b("s_lshr_b32 s33, s33, 9")
            b("s_mul_i32 s34, s33, 9")
            b("s_sub_u32 s34, s32, s34")
            b("s_bitcmp1_b32 s33, 0")
            b("s_cselect_b32 s8, s26, s24")
            b("s_cselect_b32 s9, s27, s25")
            b("s_lshr_b32 s33, s33, 1")
            b("s_lshr_b32 s35, s33, 1")
            b("s_bitcmp1_b32 s33, 0")
            b("s_cselect_b32 s33, 5, 0")
            b("s_add_u32 s33, s33, s35")
            b("s_lshl_b32 s33, s33, 7")
            b(f"s_mul_i32 s34, s34, {64*9216}")
            b("s_add_u32 s33, s33, s34")
            b("s_add_u32 s33, s33, s30")
            b(f"buffer_load_dword v{8+k}, v6, s[8:11], s33 offen{opt.get('pf', '')}")
    if opt.get('rt'): rt_end(b, 0)
    side = finalize([Ins("s_nop 4")] + b.ins)
    txt = (khead(name) + "\n" + render(stat) + f"\n{name}_side:\n" + render(side) + f"\n  s_endpgm\n{name}_main:\n" + render(main)
           + f"\n{name}_end:\n  s_endpgm\n")
    return txt, kdesc(name, 256, 0, 102 if opt.get('rt') or opt.get('sp') else 64), K1_LDS, 256
```

```python
from asmgen import *
import os
T_OFF = 0
H_OFF = 0x240000
X_OFF = 0x480000
Z_OFF = 0x6C0000
MX_OFF = 0x6C2000
MU_OFF = 0x6C4000
FL_OFF = 0x6D0000
ST_OFF = 0x700000
P_OFF = 0x800000
PSZ = 0x240000
NPART = 8
A_REL = NPART * PSZ
SLOT = 36864
K3_LDS = 4 * SLOT

def gen_k3(name="ffn_kernel", stflag=" sc1", stamps=False, opt=None, code_end=None):
    opt = opt or {}
    code_end = code_end or f"{name}_end"
    b = Block()
    vLane = 1
    vR1 = 2
    vR3 = 4
    vR2 = 8
    vC1 = 12; vVar = 13; vSt = 14; vX = 15
    vACT = 16
    vG0 = vACT + 72
    vG1 = vG0 + 16
    vU0 = vG1 + 16
    vU1 = vU0 + 16
    vSA = vU1 + 16
    vDA = vSA + 16
    vDB = vDA + 9
    vDC = vDB + 9
    vDD = vDC + 9
    vDE = vDD + 9
    vPA = vDE + 9; vPB = vPA + 1
    vFl = vPB + 1; vOne = vFl + 1; vPoll = vOne + 1; vZ = vPoll + 1
    vTmp = vZ + 1
    NVG = vTmp + 12
    aH = 0
    aF = 144
    aP = aF + 32
    NA = aP + 72
    hfrag = lambda kk: f"a[{aH+4*kk}:{aH+4*kk+3}]"
    TM = "s_memrealtime" if opt.get("rtst") else "s_memtime"
    rot = opt.get('rot', 0)
    b("s_cmp_ge_u32 s2, 256")
    b(f"s_cbranch_scc1 {name}_end")
    if opt.get('rt'): rt_begin(b)
    b("s_load_dwordx4 s[4:7], s[0:1], 48")
    b("s_load_dwordx2 s[36:37], s[0:1], 64")
    b("s_load_dwordx2 s[38:39], s[0:1], 88")
    if stamps: b(f"{TM} s[48:49]")
    b(f"v_and_b32 v{vLane}, 63, v0")
    b(f"v_lshrrev_b32 v{vX}, 6, v0")
    b(f"v_readfirstlane_b32 s28, v{vX}")
    lb = opt.get('lb', 1)
    nx = 4 - lb
    if nx >= 3:
        b("s_and_b32 s30, s2, 7")
        b("s_mov_b32 s29, 0")
    else:
        b(f"s_and_b32 s30, s2, {(1 << nx) - 1}")
        b(f"s_bfe_u32 s29, s2, {((3 - nx) << 16) | nx}")
        b(f"s_lshl_b32 s29, s29, {5 - lb}")
    b(f"s_lshl_b32 s30, s30, {lb}")
    b(f"s_bfe_u32 s31, s2, {(lb << 16) | 3}")
    b("s_or_b32 s30, s30, s31")
    b(f"s_lshr_b32 s3, s2, {3 + lb}")
    b("s_add_u32 s29, s29, s3")
    b("s_and_b32 s45, s30, 1")
    b("s_mul_i32 s31, s30, 576")
    b("s_lshl_b32 s40, s45, 6")
    b("s_add_u32 s44, s31, s40")
    b("s_xor_b32 s40, s45, 1")
    b("s_lshl_b32 s40, s40, 9")
    b("s_add_u32 s31, s31, s40")
    if rot:
        b(f"s_mul_i32 s40, s45, {288*9216}")
        b("s_add_u32 s46, s44, s40")
        b(f"s_sub_u32 s40, {288*9216}, s40")
        b("s_add_u32 s47, s44, s40")
    else:
        b("s_mov_b32 s46, s44")
        b(f"s_add_u32 s47, s44, {288*9216}")
    b("s_mul_i32 s32, s28, 9216")
    b("s_lshl_b32 s34, s29, 2")
    b("s_add_u32 s34, s34, s28")
    b("s_mul_i32 s34, s34, 36864")
    t0, t1, t2 = vTmp, vTmp + 1, vTmp + 2
    b(f"v_and_b32 v{t1}, 3, v{vLane}")
    b(f"v_lshlrev_b32 v{t1}, 4, v{t1}")
    b(f"v_lshrrev_b32 v{t2}, 5, v{vLane}")
    b(f"v_lshl_add_u32 v{t2}, v{t2}, 6, v{t1}")
    b(f"v_bfe_u32 v{t0}, v{vLane}, 2, 3")
    b(f"s_mul_i32 s40, s28, {72*9216}")
    b(f"v_mul_u32_u24 v{vDA}, 9216, v{t0}")
    b(f"v_add3_u32 v{vDA}, v{vDA}, v{t2}, s40")
    for i in range(1, 9):
        b(f"v_add_u32 v{vDA+i}, {i*8*9216 - (i%4)*1024}, v{vDA}")
    b(f"v_lshlrev_b32 v{vSt}, 4, v{vLane}")
    b("s_waitcnt lgkmcnt(0)")
    srd(b, 8, 4, 576 * 9216)
    srd(b, 20, 38, 0x800000)

    NST = 27
    P2 = [('own', 0), ('own', 1), ('own', 2), ('own', 3), ('one', 0), ('par', 0), ('par', 1), ('par', 2), ('par', 3)]
    def dma_list(s):
        slot = (s % 4) * SLOT
        if s < 16:
            sc, ph = s // 4, s % 4
            sr = 8 if ph < 2 else 12; vo = vDA
            first = Ins(f"s_add_u32 s41, s{46 + ph % 2}, {sc * 128}")
        elif s < 18:
            sr = 8 if s == 16 else 12; vo = vDB
            first = Ins("s_mov_b32 s41, s31")
        else:
            sr = 16
            kind, pr = P2[s - 18]
            vo = {'own': vDC, 'par': vDD, 'one': vDE}[kind]
            first = Ins(f"s_add_u32 s41, s36, {pr * 128}") if kind != 'one' else Ins("s_mov_b32 s41, s37")
        l = []
        for i in range(9):
            it = [first] if i == 0 else []
            io = i % 4
            if io == 0:
                it.insert(0, Ins(f"s_add_u32 m0, s32, {slot + i * 1024}"))
            off = f" offset:{io*1024}" if io else ""
            it.append(Ins(f"buffer_load_dwordx4 v{vo+i}, s[{sr}:{sr+3}], s41 offen{off}{opt.get('wf1', '') if s < 18 else opt.get('wf2', '')} lds", tok=f"dma{s}"))
            l.append(it)
        return l
    for it in dma_list(0):
        for i in it: b.add(i)
    hfl = opt.get('hflag', '')
    def hload(kk):
        l = []
        k2 = kk % 18
        if kk == 0:
            if rot: l += [Ins("s_mul_i32 s42, s45, 18432"), Ins("s_add_u32 s42, s42, s34"), Ins(f"s_add_u32 s42, s42, {H_OFF}")]
            else: l += [Ins(f"s_add_u32 s42, s34, {H_OFF}")]
        elif kk == 18:
            if rot: l += [Ins("s_mul_i32 s42, s45, 18432"), Ins("s_sub_u32 s42, s34, s42"), Ins(f"s_add_u32 s42, s42, {H_OFF + 18432}")]
            else: l += [Ins(f"s_add_u32 s42, s34, {H_OFF + 18432}")]
        elif k2 % 4 == 0:
            l.append(Ins("s_add_u32 s42, s42, 4096"))
        off = f" offset:{(k2%4)*1024}" if k2 % 4 else ""
        l.append(Ins(f"buffer_load_dwordx4 {hfrag(kk)}, v{vSt}, s[20:23], s42 offen{off}{hfl}"))
        return l
    HPRE = opt.get('hpre', 8)
    for kk in range(HPRE):
        for i in hload(kk): b.add(i)
    srd(b, 12, 6, 576 * 9216)
    srd(b, 16, 36, 4608 * 1152)
    srd(b, 24, 38, A_REL + 256 * 73728, P_OFF)
    b("s_mul_i32 s33, s30, 331776")
    b("s_and_b32 s40, s2, 7")
    b(f"s_mul_i32 s35, s40, {PSZ}")
    b("s_add_u32 s35, s35, s34")
    b(f"s_mul_i32 s36, s40, {576*1152}")
    b("s_lshl_b32 s40, s45, 6")
    b("s_add_u32 s37, s36, s40")
    b("s_add_u32 s37, s37, 512")
    b("s_mul_i32 s40, s45, 640")
    b("s_add_u32 s36, s36, s40")
    b("s_mul_i32 s38, s2, 73728")
    b("s_mul_i32 s40, s28, 18432")
    b(f"s_add_u32 s40, s40, {A_REL}")
    b("s_add_u32 s38, s38, s40")
    b("s_xor_b32 s39, s2, 8")
    b("s_mul_i32 s39, s39, 73728")
    b("s_add_u32 s39, s39, s40")
    b(f"v_mul_u32_u24 v{vTmp+3}, 1152, v{t0}")
    b(f"v_add_u32 v{vTmp+3}, v{vTmp+3}, v{t2}")
    for vo, flip in ((vDC, 0), (vDD, 1)):
        b(f"s_xor_b32 s29, s45, {flip}")
        b(f"s_mul_i32 s40, s28, {72*1152}")
        b(f"s_mul_i32 s43, s29, {320*1152}")
        b("s_add_u32 s40, s40, s43")
        b(f"v_add_u32 v{vo}, s40, v{vTmp+3}")
        b("s_cmp_eq_u32 s28, 3")
        b("s_cselect_b32 s43, s29, 0")
        b(f"s_mul_i32 s43, s43, {288*1152}")
        b(f"s_sub_u32 s43, {5*8*1152 - 1024}, s43")
        for i in range(1, 5): b(f"v_add_u32 v{vo+i}, {i*8*1152 - (i%4)*1024}, v{vo}")
        b(f"v_add_u32 v{vo+5}, s43, v{vo}")
        for i in range(6, 9): b(f"v_add_u32 v{vo+i}, {(i-5)*8*1152 - (i%4)*1024 + 1024}, v{vo+5}")
    b(f"v_lshrrev_b32 v{t0}, 2, v{vLane}")
    b(f"v_mul_u32_u24 v{vTmp+3}, 1152, v{t0}")
    b("s_lshr_b32 s29, s28, 1")
    b("s_xor_b32 s29, s29, s45")
    b("s_and_b32 s43, s28, 1")
    b(f"s_mul_i32 s40, s43, {144*1152}")
    b("s_and_b32 s43, s43, s29")
    b(f"s_mul_i32 s29, s29, {320*1152}")
    b("s_add_u32 s40, s40, s29")
    b(f"v_add3_u32 v{vDE}, v{vTmp+3}, v{t1}, s40")
    b(f"s_mul_i32 s43, s43, {288*1152}")
    b(f"s_sub_u32 s43, {7*16*1152 - 3072}, s43")
    for i in range(1, 7): b(f"v_add_u32 v{vDE+i}, {i*16*1152 - (i%4)*1024}, v{vDE}")
    b(f"v_add_u32 v{vDE+7}, s43, v{vDE}")
    b(f"v_add_u32 v{vDE+8}, {16*1152 + 3072}, v{vDE+7}")
    b(f"v_lshrrev_b32 v{t0}, 2, v{vLane}")
    if rot:
        b("s_lshl_b32 s40, s45, 1\ns_add_u32 s40, s40, s28\ns_and_b32 s40, s40, 3")
        b(f"s_mul_i32 s40, s40, {9*16*9216}")
    else:
        b(f"s_mul_i32 s40, s28, {9*16*9216}")
    b(f"v_mul_u32_u24 v{vDB}, 9216, v{t0}")
    b(f"v_add3_u32 v{vDB}, v{vDB}, v{t1}, s40")
    for i in range(1, 9):
        b(f"v_add_u32 v{vDB+i}, {i*16*9216 - (i%4)*1024}, v{vDB}")
    b(f"v_lshrrev_b32 v{t0}, 1, v{t1}")
    b(f"v_bfe_u32 v{t1}, v{vLane}, 4, 1")
    b(f"v_lshl_add_u32 v{t0}, v{t1}, 5, v{t0}")
    b(f"v_bfe_u32 v{t1}, v{vLane}, 2, 2")
    b(f"v_lshl_add_u32 v{t0}, v{t1}, 6, v{t0}")
    b(f"v_lshrrev_b32 v{t1}, 5, v{vLane}")
    b(f"v_lshl_add_u32 v{vR3}, v{t1}, 10, v{t0}")
    b(f"v_lshl_add_u32 v{vR1}, v{t1}, 9, v{t0}")
    b(f"v_lshl_add_u32 v{vR2}, v{t1}, 8, v{t0}")
    b(f"v_add_u32 v{vR1+1}, {SLOT}, v{vR1}")
    for s in range(1, 4):
        b(f"v_add_u32 v{vR3+s}, {s*SLOT}, v{vR3}")
        b(f"v_add_u32 v{vR2+s}, {s*SLOT}, v{vR2}")
    b(f"v_lshlrev_b32 v{vX}, 7, v{vLane}")
    assert lb == 1
    b("s_lshl_b32 s3, s3, 2")
    b("s_add_u32 s3, s3, s28")
    b(f"s_mul_i32 s40, s3, {9*9216}")
    b(f"v_mul_u32_u24 v{vPA}, 9216, v{vLane}")
    b(f"v_add_u32 v{vPA}, s40, v{vPA}")
    b("s_mul_i32 s40, s3, 5184")
    b(f"v_add_u32 v{vPB}, s40, v{vX}")
    b(f"v_cmp_lt_u32 vcc, 8, v{vLane}")
    b(f"v_mov_b32 v{t0}, 0x40000000")
    b(f"v_cndmask_b32 v{vPA}, v{vPA}, v{t0}, vcc")
    b(f"v_cndmask_b32 v{vPB}, v{vPB}, v{t0}, vcc")
    b(f"v_cmp_lt_u32 vcc, 0, v{vLane}")
    b(f"v_mov_b32 v{vZ}, 0")
    b(f"v_mov_b32 v{vOne}, 1")
    b(f"v_cndmask_b32 v{vFl}, v{vZ}, v{t0}, vcc")
    b("s_lshl_b32 s29, s2, 7")
    b(f"s_add_u32 s29, s29, {FL_OFF}")
    b("s_xor_b32 s30, s29, 1024")
    if opt.get('pfcode', 1):
        code_srd(b, 4, f"{name}_body", code_end, f"{name}_pc")
    b(f"{name}_body:")

    M = []
    def acc_str(r):
        if isinstance(r, int): return f"v[{r}:{r+15}]"
        return f"{r[0]}[{int(r[1:])}:{int(r[1:])+15}]"
    stage_start = {}; done = {}; first = {}
    CS0 = opt.get('cs0', 6)
    hpos = {}
    for s in range(16):
        sc, ph = s // 4, s % 4
        isu, hi = ph >= 2, ph % 2
        stage_start[s] = len(M)
        order = [(ct, kk) for ct in range(2) for kk in range(18)]
        if s < 2: order = [(ct, kk) for kk in range(18) for ct in range(2)]
        for n, (ct, kk) in enumerate(order):
            ch = 2 * sc + ct
            acc = [[vG0, vG1], [vU0, vU1]][isu][ct]
            if not hi and kk == 0: first[('GU'[isu], ch)] = len(M)
            M.append(dict(acc=acc, rd=(vR3 + s % 4, kk * 2048 + ct * 512, kk * 2048 + ct * 512 + 256),
                          b=hfrag(18 * hi + kk), c0=(kk == 0 and not hi), stage=s))
            if s < 2 and ct == 1: hpos[18 * hi + kk] = len(M) - 1
            if hi and kk == 17: done[('GU'[isu], ch)] = len(M) - 1
    for s in (16, 17):
        stage_start[s] = len(M)
        acc = vG0 if s == 16 else vU0
        first[('GU'[s - 16], 8)] = len(M)
        for kk in range(36):
            M.append(dict(acc=acc, rd=(vR1 + s - 16, kk * 1024, kk * 1024 + 256), b=hfrag(kk), c0=(kk == 0), stage=s))
        done[('GU'[s - 16], 8)] = len(M) - 1
    chain_last = {}
    pacc = {0: (f"v{vG1}", f"v{vU1}"), 1: (f"v{vG0}", f"v{vU0}"), 2: ("a0", "a16"), 3: ("a32", "a48")}
    own = lambda kk: f"v[{vACT+4*kk}:{vACT+4*kk+3}]"
    par = lambda kk: f"a[{aP+4*kk}:{aP+4*kk+3}]"
    for s in range(18, NST):
        stage_start[s] = len(M)
        kind, pr = P2[s - 18]
        if kind == 'one':
            for kk in range(36):
                M.append(dict(acc="a64", rd=(vR2 + s % 4, kk * 1024, kk * 1024 + 512),
                              b=own(kk) if kk < 18 else par(kk - 18), c0=(kk == 0), stage=s))
            chain_last[('one', 0)] = len(M) - 1
            continue
        for ct in range(2):
            for kk in range(18):
                M.append(dict(acc=pacc[pr][ct], rd=(vR2 + s % 4, kk * 2048 + ct * 512, kk * 2048 + 1024 + ct * 512),
                              b=own(kk) if kind == 'own' else par(kk), c0=(kk == 0 and kind == 'own'), stage=s))
            if kind == 'par': chain_last[(pr, ct)] = len(M) - 1
    NM = len(M)
    gaps = [[] for _ in range(NM + 1)]
    cost = [0] * (NM + 1)
    def put(g, inss, c=None):
        g = min(g, NM - 1)
        if not isinstance(inss, list): inss = [inss]
        gaps[g + 1].extend(inss)
        for i in inss:
            cost[g + 1] += (8 if i.kind == 'trans' else 4) if c is None else c
    R = [g for g in range(NM) if M[g]['rd'] is not None]
    LA = opt.get('la', 6)
    BARL = opt.get('barl', 4)
    bar_pos = {s: stage_start[s] - BARL for s in range(1, NST)}
    bar_pos[0] = -1
    bar_ins = {}
    for s in range(NST):
        needs = [f"dma{s}"] + ([f"rd{g}" for g in R if M[g]['stage'] == s - 1] if s else [])
        if stamps and s >= 1 and not opt.get('fine'):
            put(bar_pos[s] - 2, Ins(f"{TM} s[{48+2*s}:{49+2*s}]", tok=f"st{s}"))
            needs = needs + [f"st{s}"]
        bar_ins[s] = Ins("s_barrier", needs=needs)
        put(bar_pos[s], [bar_ins[s]], 8)
    if stamps and opt.get('fine'):
        for k in range(1, 27):
            put(-1 + 4 * (k - 1), [Ins(f"{TM} s[{48+2*k}:{49+2*k}]"), Ins("s_waitcnt lgkmcnt(0)")])
    nrd = {}
    for n, g in enumerate(R):
        buf = aF + 4 * (n % 8)
        M[g]['a'] = f"a[{buf}:{buf+3}]"
        base, o0, o1 = M[g]['rd']
        p = R[n - LA] if n >= LA else -1
        p = max(p, bar_pos[M[g]['stage']])
        while nrd.get(p, 0) >= (2 if p not in bar_pos.values() else (1 if p >= 0 else 4)): p += 1
        assert p < g, (g, p)
        if n >= 8: assert p >= R[n - 8], (g, p)
        nrd[p] = nrd.get(p, 0) + 1
        M[g]['rp'] = p
        put(p, [Ins(f"ds_read_b64_tr_b16 a[{buf}:{buf+1}], v{base} offset:{o0}", tok=f"rd{g}"),
                Ins(f"ds_read_b64_tr_b16 a[{buf+2}:{buf+3}], v{base} offset:{o1}", tok=f"rd{g}")])
    seq = []
    d1, d2, d3 = dma_list(1), dma_list(2), dma_list(3)
    hs = [hload(kk) for kk in range(HPRE, 36)]
    n1 = 18 - HPRE + opt.get('hx', 2)
    a_, rest = hs[:n1], hs[n1:]
    while a_ or d1:
        if a_: seq.append(a_.pop(0))
        if d1: seq.append(d1.pop(0))
    while rest or d2:
        for _ in range(2):
            if rest: seq.append(rest.pop(0))
        if d2: seq.append(d2.pop(0))
    seq += d3
    for k, it in enumerate(seq): put(k - 1, it)
    prev_end = len(seq)
    DSTEP = opt.get('dstep', 3)
    PUB = stage_start[19] + opt.get('pub', 10)
    for s in range(4, NST):
        items = dma_list(s)
        g0 = max(bar_pos[s - 3] + 5, prev_end + 2)
        step = DSTEP if s > 5 else 2
        if s == 22: g0 = PUB + 2; step = 2
        for k, it in enumerate(items):
            if opt.get('nodma'): continue
            put(g0 + k * step - 1, it[:-1]); put(g0 + k * step, it[-1:])
        prev_end = g0 + 8 * step
        assert prev_end < bar_pos[s] - 8, (s, prev_end, bar_pos[s])
    dummy = vTmp + 9
    if opt.get('pfwd', 1):
        todo = []
        for sc in range(opt.get('pf0', 2), 4): todo += [(8, vPA, 's44', sc * 128), (12, vPA, 's44', sc * 128)]
        todo += [(8, vPA, 's31', 0), (12, vPA, 's31', 0)]
        for k in range(5): todo.append((16, vPB, 's33', k * 1152))
        for k, (sr, vo, sb, c) in enumerate(todo):
            pos = opt.get('pfpos', [2.0, 2.3, 4.7, 5.2, 5.7, 6.2, 8.7, 9.1, 9.5, 9.9, 10.3])[k]
            g = stage_start[int(pos)] + int((pos % 1) * 36)
            put(g - 1, Ins(f"s_add_u32 s3, {sb}, {c}"))
            put(g, Ins(f"buffer_load_dword v{dummy+(k&1)}, v{vo}, s[{sr}:{sr+3}], s3 offen{opt.get('pff', '')}", tok='touch'))
    if opt.get('pfcode', 1):
        for rnd, st in enumerate(opt.get('pfcs', (4, 12))):
            g = bar_pos[st] + 2
            put(g - 4, [Ins("s_lshl_b32 s40, s28, 13"), Ins(f"s_add_u32 s40, s40, {opt.get('pfco', (4096, 16384))[rnd]}")])
            put(g, Ins(f"buffer_load_dword v{dummy+2}, v{vX}, s[4:7], s40 offen", tok='touch'))
    def spread(inss, g_lo, g_hi):
        tot = sum(8 if i.kind == 'trans' else 4 for i in inss)
        base = sum(cost[g + 1] for g in range(g_lo, g_hi + 1))
        level = (tot + base) / (g_hi - g_lo + 1)
        g = g_lo; carry = 0.0
        for i in inss:
            c = 8 if i.kind == 'trans' else 4
            while g < g_hi and cost[g + 1] + c > level + carry + 2:
                carry += level - cost[g + 1]
                g += 1
            put(g, i)
    for kk in range(36):
        if opt.get('nostats'): break
        l = []
        for j in range(2):
            hr = f"a[{aH+4*kk+2*j}:{aH+4*kk+2*j+1}]"
            acc = vSA + 4 * j
            c = "0" if kk == 0 else f"v[{acc}:{acc+3}]"
            l.append(Ins(f"v_mfma_f32_4x4x4_16b_bf16 v[{acc}:{acc+3}], {hr}, {hr}, {c}"))
        put(hpos[kk], l, 8)
    u1, vQ0 = vTmp + 1, vTmp + 3
    fin = [Ins("s_mov_b32 vcc_lo, 0xaaaaaaaa"), Ins("s_mov_b32 vcc_hi, 0xaaaaaaaa")]
    for i in range(4): fin.append(Ins(f"v_add_f32 v{vSA+i}, v{vSA+i}, v{vSA+4+i}"))
    fin += [Ins(f"v_cndmask_b32 v{vSA}, v{vSA}, v{vSA+1}, vcc"), Ins(f"v_cndmask_b32 v{vSA+2}, v{vSA+2}, v{vSA+3}, vcc"),
            Ins("s_mov_b32 vcc_lo, 0xcccccccc"), Ins("s_mov_b32 vcc_hi, 0xcccccccc"),
            Ins(f"v_cndmask_b32 v{vQ0}, v{vSA}, v{vSA+2}, vcc"),
            Ins(f"v_mov_b32 v{u1}, v{vQ0}"),
            Ins(f"v_mov_b32 v{vVar}, 0x3727c5ac"),
            Ins(f"v_permlane32_swap_b32 v{u1}, v{vQ0}"),
            Ins(f"v_add_f32 v{vQ0}, v{u1}, v{vQ0}"),
            Ins(f"v_fmac_f32 v{vVar}, 0x3ae38e39, v{vQ0}"),
            Ins(f"v_rsq_f32 v{vC1}, v{vVar}"),
            Ins(f"v_mul_f32 v{vC1}, 0xbfb8aa3b, v{vC1}")]
    spread(fin, stage_start[2], stage_start[2] + CS0 - 1)
    def w1(G):
        l = []
        for e0 in range(0, 16, 4):
            T = vTmp + (e0 & 4)
            for e in range(4): l.append(Ins(f"v_mul_f32 v{T+e}, v{G+e0+e}, v{vC1}"))
            for e in range(4): l.append(Ins(f"v_exp_f32 v{T+e}, v{T+e}"))
            for e in range(4): l.append(Ins(f"v_fma_f32 v{T+e}, v{T+e}, v{vVar}, v{vVar}"))
            for e in range(4): l.append(Ins(f"v_rcp_f32 v{T+e}, v{T+e}"))
            for e in range(4): l.append(Ins(f"v_mul_f32 v{G+e0+e}, v{G+e0+e}, v{T+e}"))
        return l
    def w2(ch, G, U):
        l = []
        for e0 in range(0, 16, 4):
            for e in range(e0, e0 + 4): l.append(Ins(f"v_mul_f32 v{U+e}, v{G+e}, v{U+e}"))
            for e in (e0, e0 + 2): l.append(Ins(f"v_cvt_pk_bf16_f32 v{vACT + 8*ch + e//2}, v{U+e}, v{U+e+1}"))
            if e0 in (4, 12):
                fr = 2 * ch + e0 // 8
                if fr % 4 == 0 and fr: l.append(Ins("s_add_u32 s38, s38, 4096"))
                off = f" offset:{(fr%4)*1024}" if fr % 4 else ""
                l.append(Ins(f"buffer_store_dwordx4 v[{vACT+4*fr}:{vACT+4*fr+3}], v{vSt}, s[24:27], s38 offen{off} sc1", tok=f"as{fr}"))
        return l
    if not opt.get('novalu'):
        for sc in range(4):
            c0, c1 = 2 * sc, 2 * sc + 1
            endsc = done[('U', c1)]
            spread(w2(c0, vG0, vU0), done[('U', c0)] + 3, endsc - 1)
            ext = 8 if sc == 0 else 3
            lim1 = (first[('G', c1 + 2)] - 2) if sc < 3 else endsc + 30
            spread(w2(c1, vG1, vU1), endsc + ext + 1, lim1)
            lo = done[('G', c0)] + 4
            if sc == 0:
                lo = stage_start[2] + CS0
                mid = lo + 33
            else: mid = max(done[('G', c1)] + 3, lo + opt.get('w1len', 41))
            assert mid < done[('U', c0)] + 3
            spread(w1(vG0), lo, mid)
            spread(w1(vG1), mid + 1, endsc + ext)
        spread(w1(vG0), done[('G', 8)] + 3, done[('U', 8)] + 3)
        spread(w2(8, vG0, vU0), done[('U', 8)] + 4, done[('U', 8)] + 14)
    NFA = opt.get('nfa', 12)
    PA = opt.get('pa', 15)
    bar_ins[PA].needs += [f"as{fr}" for fr in range(NFA)]
    put(bar_pos[PA], Ins(f"buffer_store_dword v{vOne}, v{vFl}, s[20:23], s29 offen sc1"))
    put(PUB - 3, Ins(f"v_mov_b32 v{vOne}, 2"))
    put(PUB, [Ins("s_waitcnt vmcnt(0)"), Ins("s_barrier"),
              Ins(f"buffer_store_dword v{vOne}, v{vFl}, s[20:23], s29 offen sc1")])
    rounds = [(1, stage_start[PA + 1] + 28, stage_start[PA + 2] + 12, range(NFA), opt.get('astep', 9)),
              (2, stage_start[20] + opt.get('poll', 26), stage_start[21] + opt.get('chk', 8), range(NFA, 18), opt.get('bstep', 4))]
    for val, POLL, CHK, frs, step in rounds:
        put(POLL, Ins(f"buffer_load_dword v{vPoll}, v{vZ}, s[20:23], s30 offen sc1"))
        put(CHK, [Ins(f"v_readfirstlane_b32 s40, v{vPoll}"), Ins(f"s_cmp_ge_u32 s40, {val}"),
                  Ins(f"s_cbranch_scc0 {name}_spin{val}"), Ins(f"{name}_go{val}:")])
        g = CHK + 1
        for fr in frs:
            l = []
            if fr % 4 == 0 and fr: l.append(Ins("s_add_u32 s39, s39, 4096"))
            off = f" offset:{(fr%4)*1024}" if fr % 4 else ""
            l.append(Ins(f"buffer_load_dwordx4 {par(fr)}, v{vSt}, s[24:27], s39 offen{off} sc1"))
            if PUB - 24 < g <= PUB: g = PUB + 1
            put(g, l)
            g += step
        assert val == 2 or g - step < rounds[1][1]
    tail = []
    order = [('one', 0)] + [(pr, ct) for pr in range(4) for ct in range(2)]
    for n, key in enumerate(order):
        pk = vSA + 8 * (n % 2)
        l = []
        if key[0] == 'one':
            acc = "a64"
            l += [Ins("s_lshl_b32 s43, s45, 11"), Ins("s_add_u32 s43, s43, s35"), Ins(f"s_add_u32 s43, s43, {8*2048}")]
            o0 = 0
        else:
            pr, ct = key
            acc = pacc[pr][ct]
            if ct == 0:
                if pr == 0: l += [Ins(f"s_mul_i32 s43, s45, {10*2048}"), Ins("s_add_u32 s43, s43, s35")]
                else: l.append(Ins("s_add_u32 s43, s43, 4096"))
            o0 = ct * 2048
        r0 = int(acc[1:])
        for hlf in range(2):
            src = r0 + 8 * hlf
            if acc[0] == 'a':
                for e in range(8): l.append(Ins(f"v_accvgpr_read_b32 v{vTmp+e}, a{src+e}"))
                src = vTmp
            for e in range(4):
                l.append(Ins(f"v_cvt_pk_bf16_f32 v{pk + 4*hlf + e}, v{src + 2*e}, v{src + 2*e + 1}"))
            o = o0 + hlf * 1024
            off = f" offset:{o}" if o else ""
            l.append(Ins(f"buffer_store_dwordx4 v[{pk+4*hlf}:{pk+4*hlf+3}], v{vSt}, s[24:27], s43 offen{off}{stflag}"))
        if n < 8:
            lo = chain_last[key] + 3
            spread(l, lo, lo + 13)
        else:
            tail = l
    for i in gaps[0]: b.add(i)
    for g in range(NM):
        m = M[g]
        needs = []
        if g + 1 < NM and M[g + 1]['rd'] is not None and g % 2 == 0 and M[g + 1]['rp'] <= g - 3:
            needs = [f"rd{g+1}"]
        c = "0" if m['c0'] else acc_str(m['acc'])
        b(f"v_mfma_f32_32x32x16_bf16 {acc_str(m['acc'])}, {m['a']}, {m['b']}, {c}", needs=needs)
        for i in gaps[g + 1]: b.add(i)
    for i in tail: b.add(i)
    if stamps:
        b(f"{TM} s[8:9]")
        b("s_waitcnt vmcnt(0)")
        b(f"{TM} s[10:11]")
        b("s_waitcnt lgkmcnt(0)")
        b("v_mov_b32 v16, 0")
        for k in range(27): b(f"v_writelane_b32 v16, s{48+2*k}, {k}")
        b("v_writelane_b32 v16, s8, 27")
        b("v_writelane_b32 v16, s10, 28")
        b("s_lshl_b32 s42, s2, 4\ns_add_u32 s42, s42, s28\ns_lshl_b32 s42, s42, 7")
        b(f"s_add_u32 s42, s42, {ST_OFF}")
        b(f"v_lshlrev_b32 v20, 2, v{vLane}")
        b("s_mov_b32 exec_hi, 0")
        b("buffer_store_dword v16, v20, s[20:23], s42 offen")
        gen_k3.names = ['start'] + [f's{k}' for k in range(1, 27)] + ['e0', 'e1']
    if opt.get('rt'): rt_end(b, 2)
    ins = finalize(b.ins, opt.get('verbose', False))
    spin = "  s_endpgm\n"
    for val in (1, 2):
        spin += f"""{name}_spin{val}:
  s_mov_b32 s42, 0x80000
{name}_spin{val}l:
  s_sleep 2
  buffer_load_dword v{vPoll}, v{vZ}, s[20:23], s30 offen sc1
  s_waitcnt vmcnt(0)
  v_readfirstlane_b32 s40, v{vPoll}
  s_sub_u32 s42, s42, 1
  s_cbranch_scc1 {name}_go{val}
  s_cmp_ge_u32 s40, {val}
  s_cbranch_scc0 {name}_spin{val}l
  s_branch {name}_go{val}
"""
    txt = khead(name) + "\n" + render(ins) + "\n" + spin + f"{name}_end:\n  s_endpgm\n"
    gen_k3.cost = cost
    return txt, kdesc(name, NVG, NA, 102), K3_LDS, max(cost)

def write_k3(path, **kw):
    txt, desc, lds, mc = gen_k3(**kw)
    o = [f"; @launch kernel=ffn_kernel grid=(256,1,1) block=(256,1,1) lds={lds}",
         '.amdgcn_target "amdgcn-amd-amdhsa--gfx950"', ".text", txt, '.section .rodata,"a"', desc]
    open(path, "w").write("\n".join(o) + "\n")
if __name__ == "__main__":
    write_k3("k3.s", stamps=True, opt=dict(verbose=True))
    print(gen_k3.cost[:260])
```

```python
import re

def expand(op):
    op = op.strip()
    neg = op.lstrip('-')
    m = re.fullmatch(r'(?:abs\()?([vas])\[(\d+):(\d+)\]\)?', neg)
    if m:
        return [f"{m.group(1)}{i}" for i in range(int(m.group(2)), int(m.group(3)) + 1)]
    m = re.fullmatch(r'(?:abs\(|\|)?([vas])(\d+)(?:\)|\|)?', neg)
    if m:
        return [f"{m.group(1)}{m.group(2)}"]
    if neg in ('vcc', 'exec', 'm0', 'scc'):
        return [neg]
    if neg in ('vcc_lo', 'vcc_hi'):
        return ['vcc']
    if neg in ('exec_lo', 'exec_hi'):
        return ['exec']
    return []

TRANS = ('v_exp_f32', 'v_log_f32', 'v_rcp_f32', 'v_rsq_f32', 'v_sqrt_f32', 'v_sin_f32', 'v_cos_f32')

class Ins:
    __slots__ = ('text', 'mn', 'kind', 'rd', 'wr', 'tok', 'needs', 'srcc', 'srcab', 'passes', 'ws', 'comment', 'dpp', 'sdwa', 'data', 'hide')
    def __init__(self, text, tok=None, needs=(), comment=None):
        self.text = text.strip()
        self.tok = tok
        self.needs = list(needs)
        self.comment = comment
        self.srcc = []; self.srcab = []; self.passes = 0; self.ws = 1
        self.data = []
        self.hide = False
        t = self.text
        parts = t.split(None, 1)
        mn = parts[0]
        self.mn = mn
        rest = parts[1] if len(parts) > 1 else ''
        ops = []; depth = 0; cur = ''
        for ch in rest:
            if ch in '[(': depth += 1
            if ch in '])': depth -= 1
            if ch == ',' and depth == 0:
                ops.append(cur.strip()); cur = ''
            else:
                cur += ch
        if cur.strip(): ops.append(cur.strip())
        mods = ''
        if ops:
            l = ops[-1].split(None, 1)
            ops[-1] = l[0]
            if len(l) > 1: mods = l[1]
        self.dpp = mn.endswith('_dpp')
        self.sdwa = mn.endswith('_sdwa')
        rd = []; wr = []
        E = expand
        if mn.endswith(':') or mn.startswith('.') or mn.startswith(';'):
            self.kind = 'label'; self.ws = 0
        elif mn.startswith('v_mfma'):
            self.kind = 'mfma'
            wr = E(ops[0]); self.srcab = E(ops[1]) + E(ops[2]); self.srcc = E(ops[3])
            rd = self.srcab + self.srcc
            self.passes = 8 if '32x32' in mn else (2 if '4x4x4' in mn else 4)
        elif mn.startswith('v_'):
            base = re.sub(r'_(e32|e64|dpp|sdwa)$', '', mn)
            self.kind = 'trans' if base in TRANS else ('dot' if base.startswith('v_dot') else 'valu')
            if base.startswith('v_cmp'):
                wr = E(ops[0]); rd = sum((E(o) for o in ops[1:]), [])
                if base.startswith('v_cmpx'): wr += ['exec']
            elif base.startswith('v_permlane') and 'swap' in base:
                wr = E(ops[0]) + E(ops[1]); rd = list(wr)
            elif base in ('v_add_co_u32', 'v_sub_co_u32', 'v_addc_co_u32', 'v_subrev_co_u32'):
                wr = E(ops[0]) + E(ops[1]); rd = sum((E(o) for o in ops[2:]), [])
            elif base == 'v_nop':
                pass
            else:
                wr = E(ops[0]); rd = sum((E(o) for o in ops[1:]), [])
                if base in ('v_fmac_f32', 'v_dot2c_f32_bf16', 'v_pk_fmac_f16', 'v_writelane_b32') or self.dpp or self.sdwa:
                    rd += E(ops[0])
            rd += ['exec']
        elif mn.startswith('ds_'):
            self.kind = 'ds'
            if mn.startswith('ds_read') or mn.startswith('ds_bpermute') or mn.startswith('ds_swizzle') or mn.startswith('ds_permute'):
                wr = E(ops[0]); rd = sum((E(o) for o in ops[1:]), [])
            else:
                rd = sum((E(o) for o in ops), [])
            rd += ['exec']
        elif mn.startswith('buffer_') or mn.startswith('global_'):
            self.kind = 'vmem'
            lds = (' lds' in (' ' + mods)) or '_lds_' in mn
            if mn in ('buffer_wbl2', 'buffer_inv'):
                pass
            elif lds:
                rd = sum((E(o) for o in ops), []) + ['m0']
                self.kind = 'dma'
            elif '_load' in mn:
                wr = E(ops[0]); rd = sum((E(o) for o in ops[1:]), [])
            elif '_store' in mn or '_atomic' in mn:
                rd = sum((E(o) for o in ops), [])
                if mn.startswith('buffer_'): self.data = E(ops[0])
                else: self.data = E(ops[1])
                if '_atomic' in mn and 'sc0' in mods:
                    wr = E(ops[0])
            rd += ['exec']
        elif mn.startswith('s_load') or mn.startswith('s_memtime') or mn.startswith('s_memrealtime') or mn.startswith('s_buffer_load'):
            self.kind = 'smem'
            wr = E(ops[0]); rd = sum((E(o) for o in ops[1:]), [])
        elif mn == 's_nop':
            self.kind = 'nop'; self.ws = int(ops[0], 0) + 1
        elif mn in ('s_waitcnt', 's_barrier', 's_endpgm', 's_setprio', 's_sleep', 's_branch') or mn.startswith('s_cbranch'):
            self.kind = 'ctl'
            if mn.startswith('s_cbranch_scc'): rd = ['scc']
            if mn.startswith('s_cbranch_vcc'): rd = ['vcc']
            if mn.startswith('s_cbranch_exec'): rd = ['exec']
        elif mn.startswith('s_cmp') or mn.startswith('s_bitcmp'):
            self.kind = 'salu'; wr = ['scc']; rd = sum((E(o) for o in ops), [])
        elif mn.startswith('s_'):
            self.kind = 'salu'
            wr = E(ops[0]) + ['scc']; rd = sum((E(o) for o in ops[1:]), [])
            if mn.startswith('s_mov') or mn.startswith('s_getpc') or mn.startswith('s_getreg') or mn.startswith('s_mul') or mn.startswith('s_cselect'):
                wr = E(ops[0])
            if mn.startswith('s_cselect') or mn.startswith('s_addc') or mn.startswith('s_subb'): rd += ['scc']
            if mn.startswith('s_bitset'): rd += E(ops[0])
            if 'saveexec' in mn: wr += ['exec']; rd += ['exec']
            if mn in ('s_addk_i32', 's_mulk_i32'): rd += E(ops[0])
        else:
            raise ValueError("unknown instruction: " + t)
        self.rd = set(rd); self.wr = set(wr)
        if tok in ('touch', 'late'): self.wr = set()
    def isvalu(self):
        return self.kind in ('valu', 'trans', 'dot')

def insert_waits(ins):
    out = []
    vm = []
    lg = []
    def do_wait(nvm, nlg):
        nonlocal vm, lg
        parts = []
        if nvm is not None:
            assert nvm <= 63
            parts.append(f"vmcnt({nvm})"); vm = vm[len(vm) - nvm:] if nvm else []
        if nlg is not None:
            nlg = min(nlg, 15)
            parts.append(f"lgkmcnt({nlg})"); lg = lg[len(lg) - nlg:] if nlg else []
        out.append(Ins("s_waitcnt " + " ".join(parts)))
    for i in ins:
        if i.mn == 's_waitcnt':
            m = re.search(r'vmcnt\((\d+)\)', i.text)
            if m:
                n = int(m.group(1)); vm = vm[max(0, len(vm) - n):] if n else []
            m = re.search(r'lgkmcnt\((\d+)\)', i.text)
            if m:
                n = int(m.group(1))
                if n == 0: lg = []
                elif not any(o['smem'] for o in lg): lg = lg[max(0, len(lg) - n):]
            out.append(i); continue
        touch = i.rd | i.wr
        nvm = None; nlg = None
        for k, o in enumerate(vm):
            if (o['regs'] & touch) or (o['tok'] is not None and o['tok'] in i.needs):
                nvm = len(vm) - k - 1
        for k, o in enumerate(lg):
            if (o['regs'] & touch) or (o['tok'] is not None and o['tok'] in i.needs):
                nlg = len(lg) - k - 1
        if nlg is not None and any(o['smem'] for o in lg): nlg = 0
        if nvm is not None and nvm > 63: nvm = 63
        if nvm is not None or nlg is not None:
            do_wait(nvm, nlg)
        out.append(i)
        if i.kind in ('vmem', 'dma') and i.tok == 'uncounted':
            assert not i.wr
        elif i.kind in ('vmem', 'dma'):
            vm.append(dict(regs=set(i.wr), tok=i.tok))
            if len(vm) > 63:
                pass
        elif i.kind == 'ds':
            lg.append(dict(regs=set(i.wr), tok=i.tok, smem=False))
        elif i.kind == 'smem':
            lg.append(dict(regs=set(i.wr), tok=i.tok, smem=True))
    return out

def need_states(p, c):
    n = 0
    pw = p.wr
    if p.isvalu():
        vw = {r for r in pw if r[0] in 'va' and r not in ('vcc',)}
        sw = {r for r in pw if r[0] == 's' and r != 'scc' or r == 'vcc'}
        if c.kind == 'mfma' and (vw & c.rd): n = max(n, 2)
        if c.isvalu():
            if p.kind == 'trans' and c.kind != 'trans' and (vw & c.rd): n = max(n, 1)
            if p.kind == 'trans' and c.kind == 'trans' and (vw & c.rd): n = max(n, 1)
            if p.sdwa and (vw & (c.rd | c.wr)): n = max(n, 1)
            if (c.mn.startswith('v_readfirstlane') or c.mn.startswith('v_readlane')) and (vw & c.rd): n = max(n, 1)
            if c.mn.startswith('v_permlane') and (vw & c.rd): n = max(n, 2)
            if c.dpp and (vw & c.rd): n = max(n, 2)
            if sw & c.rd: n = max(n, 4 if (c.mn.startswith('v_readlane') or c.mn.startswith('v_writelane')) else 2)
            if 'exec' in pw and c.dpp: n = max(n, 5)
            if 'exec' in pw and (c.mn.startswith('v_readfirstlane') or c.mn.startswith('v_readlane') or c.mn.startswith('v_permlane')): n = max(n, 4)
        if p.kind == 'dot':
            if vw & (c.rd | c.wr):
                same = (c.mn == p.mn)
                if same and c.kind == 'dot':
                    ops_ab = set()
                    m = c.text.split(None, 1)[1].split(',')
                    for o in m[1:3]: ops_ab |= set(expand(o.strip().split()[0]))
                    if vw & ops_ab: n = max(n, 3)
                else:
                    n = max(n, 3)
        if c.kind in ('vmem', 'dma') and (sw & c.rd): n = max(n, 5)
        if c.kind == 'salu' and (sw & c.rd): n = max(n, 1)
        if 'exec' in pw and c.kind == 'mfma': n = max(n, 4)
    if p.kind == 'mfma':
        ix = {2: 0, 4: 1, 8: 2}[p.passes]
        D = pw
        if c.kind == 'mfma':
            if D & set(c.srcab): n = max(n, (5, 8, 12)[ix])
            if D & set(c.srcc):
                if set(c.srcc) == D and c.passes == p.passes: n = max(n, (2, 0, 0)[ix])
                else: n = max(n, (4, 6, 10)[ix])
            elif D & c.wr:
                n = max(n, (4, 6, 10)[ix])
        elif c.isvalu() or c.kind in ('vmem', 'dma', 'ds'):
            if D & (c.rd | c.wr): n = max(n, (5, 8, 12)[ix])
            if c.isvalu() and (set(p.srcc) & c.wr): n = max(n, (1, 3, 7)[ix])
    if p.kind == 'salu' and 'm0' in pw and c.kind == 'dma': n = max(n, 1)
    if p.kind == 'vmem' and p.data and len(p.data) >= 3:
        if set(p.data) & c.wr: n = max(n, 2 if c.isvalu() else 1)
    if p.kind == 'ds' and p.mn.startswith('ds_write') :
        pass
    return n

def insert_nops(ins, verbose=False):
    out = []
    added = 0
    for c in ins:
        if c.kind == 'label':
            out.append(c); continue
        dist = 0; need = 0
        for p in reversed(out[-40:]):
            r = need_states(p, c)
            if r > dist: need = max(need, r - dist)
            dist += p.ws
            if dist >= 13: break
        while need > 0:
            k = min(need, 16)
            out.append(Ins(f"s_nop {k - 1}")); added += k
            if verbose: print("nop", k, "before", c.text)
            need -= k
        out.append(c)
    return out, added

def finalize(ins, verbose=False):
    ins = insert_waits(ins)
    ins, added = insert_nops(ins, verbose)
    return ins

def render(ins):
    o = []
    for i in ins:
        if i.hide: continue
        t = i.text if i.kind == 'label' else "  " + i.text
        if i.comment: t += "  ; " + i.comment
        o.append(t)
    return "\n".join(o)

class Block:
    def __init__(self):
        self.ins = []
    def __call__(self, text, tok=None, needs=(), comment=None):
        for line in text.split("\n"):
            if line.strip():
                self.ins.append(Ins(line, tok=tok, needs=needs, comment=comment))
        return self.ins[-1]
    def phantom(self, tok, n=1):
        for _ in range(n):
            i = Ins("buffer_wbl2", tok=tok); i.hide = True; i.ws = 0
            self.ins.append(i)
    def add(self, i):
        self.ins.append(i)

def kdesc(name, vgpr, agpr, sgpr=96):
    acc = (vgpr + 3) // 4 * 4
    nfv = acc + agpr if agpr else vgpr
    return f""".p2align 6
.amdhsa_kernel {name}
  .amdhsa_next_free_vgpr {nfv}
  .amdhsa_next_free_sgpr {sgpr}
  .amdhsa_accum_offset {acc}
  .amdhsa_group_segment_fixed_size 0
  .amdhsa_kernarg_size 96
  .amdhsa_user_sgpr_count 2
  .amdhsa_user_sgpr_kernarg_segment_ptr 1
  .amdhsa_system_sgpr_workgroup_id_x 1
  .amdhsa_float_denorm_mode_32 3
.end_amdhsa_kernel"""

def khead(name):
    return f".globl {name}\n.p2align 8\n.type {name},@function\n{name}:"

def srd(b, d, base, nbytes, off=0):
    if off:
        b(f"s_add_u32 s{d}, s{base}, {off}")
        b(f"s_addc_u32 s{d+1}, s{base+1}, 0")
    else:
        b(f"s_mov_b32 s{d}, s{base}")
        b(f"s_mov_b32 s{d+1}, s{base+1}")
    b(f"s_mov_b32 s{d+2}, {nbytes}")
    b(f"s_mov_b32 s{d+3}, 0x20000")

RT_OFF = 0x780000
def rt_begin(b):
    b("s_memrealtime s[90:91]")
    b("s_memtime s[100:101]")
def rt_end(b, kidx, wave_sgpr=28):
    b("s_waitcnt vmcnt(0) lgkmcnt(0)")
    b("s_memrealtime s[82:83]")
    b("s_memtime s[96:97]")
    b("s_load_dwordx2 s[98:99], s[0:1], 88")
    b("s_waitcnt lgkmcnt(0)")
    b(f"s_add_u32 s84, s98, {RT_OFF + kidx * 0x10000}")
    b("s_addc_u32 s85, s99, 0")
    b("s_mov_b32 s86, 0x10000")
    b("s_mov_b32 s87, 0x20000")
    b("s_mov_b64 exec, -1")
    b("v_mov_b32 v4, s90\nv_mov_b32 v5, s82\nv_mov_b32 v6, s100\nv_mov_b32 v7, s96")
    b("s_lshl_b32 s88, s2, 4")
    b(f"s_add_u32 s88, s88, s{wave_sgpr}")
    b("s_lshl_b32 s88, s88, 4")
    b("v_mov_b32 v3, 0")
    b("s_mov_b64 exec, 1")
    b("buffer_store_dwordx4 v[4:7], v3, s[84:87], s88 offen")

SP_OFF = 0x700000
class Stamps:
    def __init__(self, on, kidx):
        self.on = on; self.n = 0; self.k = kidx; self.names = []
    def __call__(self, b, name):
        if not self.on: return
        assert self.n < 17
        b(f"s_memtime s[{48+2*self.n}:{49+2*self.n}]")
        b("s_waitcnt lgkmcnt(0)")
        self.names.append(name); self.n += 1
    def dump(self, b, wave_sgpr=28):
        if not self.on: return
        b("s_waitcnt vmcnt(0)")
        self(b, "end")
        b("s_load_dwordx2 s[98:99], s[0:1], 88")
        b("s_waitcnt lgkmcnt(0)")
        b(f"s_add_u32 s84, s98, {SP_OFF}")
        b("s_addc_u32 s85, s99, 0")
        b("s_mov_b32 s86, 0x80000")
        b("s_mov_b32 s87, 0x20000")
        b("s_mov_b64 exec, -1")
        b("v_mov_b32 v4, 0")
        for k in range(self.n): b(f"v_writelane_b32 v4, s{48+2*k}, {k}")
        b("v_mbcnt_lo_u32_b32 v3, -1, 0")
        b("v_lshlrev_b32 v3, 2, v3")
        b("s_lshl_b32 s88, s2, 4")
        b(f"s_add_u32 s88, s88, s{wave_sgpr}")
        b("s_lshl_b32 s88, s88, 7")
        b("s_mov_b32 exec_hi, 0")
        b("buffer_store_dword v4, v3, s[84:87], s88 offen")

def code_srd(b, d, lab_start, lab_end, uniq):
    b(f"s_getpc_b64 s[{d}:{d+1}]")
    b(f"{uniq}:")
    b(f"s_add_u32 s{d}, s{d}, {lab_start}-{uniq}")
    b(f"s_addc_u32 s{d+1}, s{d+1}, 0")
    b(f"s_mov_b32 s{d+2}, {lab_end}-{lab_start}")
    b(f"s_mov_b32 s{d+3}, 0x20000")
```

```python
from asmgen import *
from k3 import T_OFF, X_OFF, Z_OFF, MX_OFF, FL_OFF
import struct
def fl(x): return hex(struct.unpack('<I', struct.pack('<f', x))[0])
K1_LDS = 86016
XL = 73728

def gen_k1(name="hid_kernel", opt=None, code_lo="fft_kernel", code_hi="red_kernel_end"):
    opt = opt or {}
    NMAIN = 192
    LA = opt.get('la', 3)
    NB = opt.get('nb', 3)
    sp = Stamps(opt.get('sp'), 0)
    h = Block()
    h("s_cmp_ge_u32 s2, 256")
    h(f"s_cbranch_scc1 {name}_end")
    if opt.get('rt'): rt_begin(h)
    sp(h, 'start')
    h("s_load_dwordx2 s[4:5], s[0:1], 0")
    h("s_load_dwordx2 s[6:7], s[0:1], 88")
    h("s_load_dwordx4 s[24:27], s[0:1], 48")
    if opt.get('own', 1):
        code_srd(h, 16, f"{name}_pc", f"{name}_end", f"{name}_pc")
        h("v_lshlrev_b32 v2, 7, v0")
        h("buffer_load_dword v3, v2, s[16:19], 0 offen")
    h("v_and_b32 v1, 63, v0")
    h("v_lshrrev_b32 v4, 6, v0")
    h("v_readfirstlane_b32 s28, v4")
    h(f"s_cmp_ge_u32 s2, {NMAIN}")
    h(f"s_cbranch_scc1 {name}_side")
    h("s_and_b32 s29, s2, 7")
    h("s_lshl_b32 s29, s29, 2")
    h("s_bfe_u32 s31, s2, 0x20003")
    h("s_or_b32 s29, s29, s31")
    h("s_lshr_b32 s30, s2, 5")
    h("v_and_b32 v12, 31, v1")
    h("v_lshrrev_b32 v13, 5, v1")
    h("v_bfe_u32 v14, v1, 1, 3")
    h("v_xor_b32 v14, v14, v13")
    h("v_lshlrev_b32 v14, 4, v14")
    vA = 16
    h(f"v_lshl_add_u32 v{vA}, v12, 7, v14")
    for ks in range(1, 4): h(f"v_xor_b32 v{vA+ks}, {32*ks}, v{vA}")
    h("s_mov_b32 s44, 0x3f803f80")
    h("s_cmp_lg_u32 s28, 3")
    h(f"s_cbranch_scc1 {name}_main")
    vFr = 64
    per = 36 // NB
    def kloop(b, work):
        def rd(s):
            if s % per == 0:
                b("s_barrier", needs=[f"d{B}" for B in range(9) if 4 * B < s + per])
                if b.main: sp(b, f'bar{s // per}')
            if s == 16:
                for ks in range(4): b(f"v_add_u32 v{vA+ks}, 32768, v{vA+ks}")
            B, ks = s // 4, s % 4
            o = B * 8192 - (32768 if s >= 16 else 0)
            for rg in range(2):
                r = vFr + 8 * (s % 4) + 4 * rg
                b(f"ds_read_b128 v[{r}:{r+3}], v{vA+ks} offset:{o + rg * 4096}")
        for s in range(LA): rd(s)
        for s in range(36):
            work(s)
            if s + LA < 36: rd(s + LA)
    b = Block(); b.main = True
    vW = 96
    vC = [240, 248]
    vK = 28; vS = 30
    b("s_mul_i32 s32, s30, 3")
    b("s_add_u32 s32, s32, s28")
    b("s_lshl_b32 s38, s32, 5")
    b("v_add_u32 v8, s38, v12")
    b("v_subrev_u32 v6, 288, v8")
    b("v_cmp_lt_u32 vcc, 288, v8")
    b("v_cndmask_b32 v5, v8, v6, vcc")
    b("v_cvt_f32_u32 v5, v5")
    b(f"v_mov_b32 v6, {fl(0.25)}")
    b("v_cndmask_b32 v6, 0, v6, vcc")
    b(f"v_mul_f32 v7, {fl(1/36)}, v5")
    b(f"v_mul_f32 v5, {fl(1/576)}, v5")
    b(f"v_cos_f32 v{vK}, v7")
    b("v_cvt_f32_u32 v7, v13")
    b(f"v_mul_f32 v7, {fl(8.0)}, v7")
    b("v_fmac_f32 v6, v5, v7")
    b(f"v_add_f32 v{vK}, v{vK}, v{vK}")
    b(f"v_mov_b32 v{vS}, 0")
    b(f"v_cndmask_b32 v{vS}, -1.0, v{vS}, vcc")
    b(f"v_mov_b32 v9, {fl(-1.25)}")
    for nn in (64, 128, 256):
        b(f"v_cmp_eq_u32 vcc, {nn}, v8")
        b(f"v_cndmask_b32 v{vS}, v{vS}, v9, vcc")
    b(f"v_mov_b32 v9, {fl(575.0)}")
    b("v_cmp_eq_u32 vcc, 0, v8")
    b(f"v_cndmask_b32 v{vS}, v{vS}, v9, vcc")
    b("v_cmp_gt_u32 vcc, 32, v1")
    b("v_mov_b32 v7, 0xffff0000")
    b("v_cndmask_b32 v7, -1, v7, vcc")
    def gen(kk):
        l = []
        c = vC[kk % 2]
        if kk % 18 < 2:
            for j in range(8): l.append(f"v_fmamk_f32 v{c+j}, v5, {fl(float(16*kk + j))}, v6")
            for j in range(8): l.append(f"v_cos_f32 v{c+j}, v{c+j}")
        else:
            p = vC[1 - kk % 2]
            if opt.get('pk', 1):
                for r in range(4):
                    l.append(f"v_pk_fma_f32 v[{c+2*r}:{c+2*r+1}], v[{p+2*r}:{p+2*r+1}], v[{vK}:{vK+1}], v[{c+2*r}:{c+2*r+1}] op_sel_hi:[1,0,1] neg_lo:[0,0,1] neg_hi:[0,0,1]")
            else:
                for j in range(8): l.append(f"v_fma_f32 v{c+j}, v{p+j}, v{vK}, -v{c+j}")
        for r in range(4): l.append(f"v_cvt_pk_bf16_f32 v{vW+4*kk+r}, v{c+2*r}, v{c+2*r+1}")
        if kk == 0: l.append(f"v_and_b32 v{vW}, v7, v{vW}")
        return l
    NG = opt.get('ng', 32)
    for kk in range(NG):
        for t in gen(kk): b(t)
    b("s_waitcnt lgkmcnt(0)")
    srd(b, 12, 6, 576 * 4096, T_OFF)
    b("v_lshlrev_b32 v11, 4, v13")
    b(f"v_add_u32 v11, {XL}, v11")
    b("v_lshlrev_b32 v10, 12, v12")
    b("v_lshl_add_u32 v10, v13, 4, v10")
    b("s_lshl_b32 s46, s32, 17")
    b("s_lshl_b32 s47, s29, 7")
    b("s_add_u32 s46, s46, s47")
    sp(b, 'gen')
    vAcc = [32, 48]
    def work(s):
        l = gen(s + NG) if s + NG < 36 else []
        for rg in range(2):
            r = vFr + 8 * (s % 4) + 4 * rg
            a = f"v[{vAcc[rg]}:{vAcc[rg]+15}]"
            b(f"v_mfma_f32_32x32x16_bf16 {a}, v[{r}:{r+3}], v[{vW+4*s}:{vW+4*s+3}], {'0' if s == 0 else a}")
            for t in (l[:len(l)//2] if rg == 0 else l[len(l)//2:]): b(t)
    kloop(b, work)
    sp(b, 'cmp')
    b("s_barrier")
    vM = vW
    for rg in range(2):
        for q in range(8): b(f"ds_read_b128 v[{vM+32*rg+4*q}:{vM+32*rg+4*q+3}], v11 offset:{256*rg + 32*q}")
    for rg in range(2):
        A, Mm, Rr, O = vAcc[rg], vM + 32 * rg, vM + 32 * rg + 16, vFr + 8 * rg
        for i in range(16): b(f"v_fmac_f32 v{A+i}, v{Mm+i}, v{vS}")
        for hf in range(2):
            for i in range(8 * hf, 8 * hf + 8): b(f"v_mul_f32 v{A+i}, v{A+i}, v{Rr+i}")
            for i in range(4 * hf, 4 * hf + 4): b(f"v_cvt_pk_bf16_f32 v{O+i}, v{A+2*i}, v{A+2*i+1}")
            o = 64 * rg + 32 * hf
            b(f"buffer_store_dwordx4 v[{O+4*hf}:{O+4*hf+3}], v10, s[12:15], s46 offen" + (f" offset:{o}" if o else ""))
    sp(b, 'sts')
    sp.dump(b)
    gen_k1.names = sp.names
    if opt.get('rt'): rt_end(b, 0)
    b("s_endpgm")
    nh = len(finalize(h.ins))
    main = finalize(h.ins + b.ins)[nh:]
    b = Block(); b.main = False
    b("v_lshrrev_b32 v5, 3, v1")
    b("s_mov_b32 s37, 73728")
    b("v_mul_lo_u32 v5, v5, s37")
    b("v_lshrrev_b32 v6, 4, v1")
    b("v_and_b32 v7, 7, v1")
    b("v_xor_b32 v6, v6, v7")
    b("v_lshlrev_b32 v6, 4, v6")
    b("v_xor_b32 v7, 64, v6")
    b("v_add_u32 v8, v5, v6")
    b(f"v_add_u32 v9, {8*73728 - 1024}, v5")
    b("v_add_u32 v9, v9, v7")
    b(f"v_add_u32 v10, {16*73728 - 2048}, v8")
    b(f"v_add_u32 v11, {16*73728 - 2048}, v9")
    b("s_mul_i32 s33, s29, 2304")
    b("s_waitcnt lgkmcnt(0)")
    srd(b, 8, 4, 2048 * 1152)
    b("s_mov_b32 m0, 0")
    b("s_add_u32 s34, s33, 1152")
    b(f"{name}_ld:")
    for rg in range(2):
        for i in range(4):
            off = f" offset:{i*1024}" if i else ""
            b(f"buffer_load_dwordx4 v{8+i}, s[8:11], s{33+rg} offen{off}{opt.get('xf', ' nt')} lds", tok='uncounted')
        b("s_add_u32 m0, m0, 4096")
        b(f"s_add_u32 s{33+rg}, s{33+rg}, 128")
    b("s_cmp_lt_u32 m0, 73728")
    b(f"s_cbranch_scc1 {name}_ld")
    for B in range(9): b.phantom(f"d{B}", 8)
    srd(b, 12, 6, 0x240000, X_OFF)
    srd(b, 16, 6, 0x4000, Z_OFF)
    b(f"s_mul_i32 s35, s29, {2*36864}")
    b("s_mul_i32 s37, s30, 6144")
    b("s_add_u32 s35, s35, s37")
    b("s_add_u32 s37, s35, 36864")
    vS = 32; vQ = 96; vOne = 30
    b(f"v_mov_b32 v{vOne}, s44\nv_mov_b32 v{vOne+1}, s44")
    b("v_lshlrev_b32 v15, 4, v1")
    b("v_lshrrev_b32 v5, 4, v12")
    b("v_lshlrev_b32 v5, 5, v5")
    b("v_bfe_u32 v6, v12, 2, 1")
    b("v_lshl_add_u32 v5, v6, 4, v5")
    b("v_bfe_u32 v6, v12, 3, 1")
    b("v_lshl_add_u32 v5, v6, 3, v5")
    b("v_and_b32 v6, 3, v12")
    b("v_lshl_add_u32 v5, v6, 1, v5")
    b("v_lshlrev_b32 v6, 2, v12")
    b(f"v_add_u32 v7, {XL}, v6")
    b("s_cmp_eq_u32 s30, 0")
    b("s_cselect_b32 s38, 0, 0x10000")
    b("s_lshl_b32 s39, s29, 7")
    b("s_add_u32 s39, s39, s38")
    b("s_lshl_b32 s40, s29, 8")
    b("s_add_u32 s40, s40, s38")
    b(f"s_add_u32 s40, s40, {MX_OFF - Z_OFF}")
    def swork(s):
        for rg in range(2):
            r = vFr + 8 * (s % 4) + 4 * rg
            if s == 0: b(f"v_lshlrev_b32 v{vS+8+rg}, 16, v{r}")
            for j in range(2):
                hr = f"v[{r+2*j}:{r+2*j+1}]"
                for w_, a in ((0, f"v[{vOne}:{vOne+1}]"), (1, hr)):
                    acc = vQ + 16 * rg + 8 * w_ + 4 * j
                    b(f"v_mfma_f32_4x4x4_16b_bf16 v[{acc}:{acc+3}], {a}, {hr}, {'0' if s == 0 else f'v[{acc}:{acc+3}]'}")
    kloop(b, swork)
    b("s_mov_b32 vcc_lo, 0xaaaaaaaa\ns_mov_b32 vcc_hi, 0xaaaaaaaa")
    b("s_mov_b32 s46, 0xcccccccc\ns_mov_b32 s47, 0xcccccccc")
    for rg in range(2):
        q = vQ + 16 * rg
        b(f"v_add_f32 v{vS+4*rg}, v{q}, v{q+4}")
        for i in range(4): b(f"v_add_f32 v{q+8+i}, v{q+8+i}, v{q+12+i}")
    for rg in range(2):
        q = vQ + 16 * rg
        b(f"v_cndmask_b32 v{q+8}, v{q+8}, v{q+9}, vcc")
        b(f"v_cndmask_b32 v{q+10}, v{q+10}, v{q+11}, vcc")
    for rg in range(2):
        q = vQ + 16 * rg
        b(f"v_cndmask_b32 v{vS+4*rg+2}, v{q+8}, v{q+10}, s[46:47]")
    for rg in range(2):
        for r in (0, 2): b(f"v_mov_b32 v{vS+4*rg+r+1}, v{vS+4*rg+r}")
    for rg in range(2):
        for r in (0, 2): b(f"v_permlane32_swap_b32 v{vS+4*rg+r+1}, v{vS+4*rg+r}")
    for rg in range(2):
        for r in (0, 2): b(f"v_add_f32 v{vS+4*rg+r}, v{vS+4*rg+r}, v{vS+4*rg+r+1}")
    for f in ["v_mul_f32 v{m}, 0xbae38e39, v{m}", "v_mul_f32 v{q}, 0x3ae38e39, v{q}", "v_fma_f32 v{q}, -v{m}, v{m}, v{q}",
              "v_max_f32 v{q}, 0, v{q}", "v_add_f32 v{q}, 0x3727c5ac, v{q}", "v_rsq_f32 v{q}, v{q}"]:
        for rg in range(2): b(f.format(m=vS + 4 * rg, q=vS + 4 * rg + 2))
    for rg in range(2):
        b(f"ds_write2_b32 v7, v{vS+4*rg}, v{vS+4*rg+2} offset0:{64*rg} offset1:{64*rg+32}", tok="sw")
    b("s_barrier", needs=["sw"])
    b("s_mul_i32 s41, s30, 6")
    b(f"v_subrev_u32 v{vA}, 32768, v{vA}")
    for i in range(6):
        b(f"s_add_u32 s42, s41, {i}")
        b("s_and_b32 s43, s42, 3")
        b("s_lshl_b32 s43, s43, 5")
        b("s_lshr_b32 s42, s42, 2")
        b("s_lshl_b32 s42, s42, 13")
        b(f"v_xor_b32 v{vA+1}, s43, v{vA}")
        b(f"v_add_u32 v{vA+1}, s42, v{vA+1}")
        for rg in range(2):
            r = 128 + 8 * i + 4 * rg
            b(f"ds_read_b128 v[{r}:{r+3}], v{vA+1} offset:{rg*4096}")
    for i in range(6):
        if i == 4: b("s_add_u32 s35, s35, 4096\ns_add_u32 s37, s37, 4096")
        off = f" offset:{(i%4)*1024}" if i % 4 else ""
        for rg in range(2):
            r = 128 + 8 * i + 4 * rg
            b(f"buffer_store_dwordx4 v[{r}:{r+3}], v15, s[12:15], s{35 + 2*rg} offen{off}")
    b("s_mov_b32 exec_hi, 0")
    for rg in range(2):
        b(f"v_add_f32 v{vS+8+rg}, v{vS+8+rg}, v{vS+4*rg}")
    for rg in range(2):
        b(f"v_mul_f32 v{vS+8+rg}, v{vS+8+rg}, v{vS+4*rg+2}")
    for rg in range(2):
        b(f"v_cvt_pk_bf16_f32 v{vS+8+rg}, v{vS+8+rg}, v{vS+8+rg}")
        b(f"buffer_store_short v{vS+8+rg}, v5, s[16:19], s39 offen" + (" offset:64" if rg else ""))
        b(f"buffer_store_dword v{vS+4*rg}, v6, s[16:19], s40 offen" + (" offset:128" if rg else ""))
    if opt.get('rt'): rt_end(b, 0)
    b("s_endpgm")
    stat = finalize(h.ins + b.ins)
    b = Block()
    b("v_lshlrev_b32 v2, 7, v1")
    b("s_sub_u32 s29, s2, 192")
    b("s_and_b32 s30, s29, 7")
    b("s_lshr_b32 s29, s29, 3")
    b("s_lshl_b32 s29, s29, 2")
    b("s_add_u32 s29, s29, s28")
    code_srd(b, 16, code_lo, code_hi, f"{name}_pc2")
    b("s_lshl_b32 s31, s29, 13")
    b("buffer_load_dword v5, v2, s[16:19], s31 offen")
    b("s_waitcnt lgkmcnt(0)")
    srd(b, 12, 6, 36864, FL_OFF)
    b("v_lshlrev_b32 v10, 4, v0")
    for r in range(4): b(f"v_mov_b32 v{12+r}, 0")
    b("s_sub_u32 s36, s2, 192")
    b("s_lshl_b32 s36, s36, 12")
    b("buffer_store_dwordx4 v[12:15], v10, s[12:15], s36 offen")
    npf = opt.get('pfw', 3)
    if npf:
        b("v_mul_u32_u24 v6, 9216, v1")
        b("s_mul_i32 s30, s30, 1152")
        b("s_waitcnt lgkmcnt(0)")
        b(f"s_mov_b32 s10, {576*9216}")
        b("s_mov_b32 s11, 0x20000")
        for k in range(npf):
            b(f"s_add_u32 s32, s29, {32*k}")
            b("s_mul_i32 s33, s32, 57")
            b("s_lshr_b32 s33, s33, 9")
            b("s_mul_i32 s34, s33, 9")
            b("s_sub_u32 s34, s32, s34")
            b("s_bitcmp1_b32 s33, 0")
            b("s_cselect_b32 s8, s26, s24")
            b("s_cselect_b32 s9, s27, s25")
            b("s_lshr_b32 s33, s33, 1")
            b("s_lshr_b32 s35, s33, 1")
            b("s_bitcmp1_b32 s33, 0")
            b("s_cselect_b32 s33, 5, 0")
            b("s_add_u32 s33, s33, s35")
            b("s_lshl_b32 s33, s33, 7")
            b(f"s_mul_i32 s34, s34, {64*9216}")
            b("s_add_u32 s33, s33, s34")
            b("s_add_u32 s33, s33, s30")
            b(f"buffer_load_dword v{8+k}, v6, s[8:11], s33 offen{opt.get('pf', '')}")
    if opt.get('rt') and not opt.get('nosrt'): rt_end(b, 0)
    side = finalize([Ins("s_nop 4")] + b.ins)
    txt = (khead(name) + "\n" + render(stat) + f"\n{name}_side:\n" + render(side) + f"\n  s_endpgm\n{name}_main:\n" + render(main)
           + f"\n{name}_end:\n  s_endpgm\n")
    return txt, kdesc(name, 256, 0, 102 if opt.get('rt') or opt.get('sp') else 64), K1_LDS, 256
```

```python
from asmgen import *
import os
T_OFF = 0
H_OFF = 0x240000
X_OFF = 0x480000
Z_OFF = 0x6C0000
MX_OFF = 0x6C2000
MU_OFF = 0x6C4000
FL_OFF = 0x6D0000
ST_OFF = 0x700000
P_OFF = 0x800000
PSZ = 0x240000
NPART = 8
A_REL = 0
SLOT = 36864
K3_LDS = 4 * SLOT + 64
FG_OFF = FL_OFF + 0x8000

def gen_k3(name="ffn_kernel", stflag=" sc1", stamps=False, opt=None, code_end=None):
    opt = opt or {}
    code_end = code_end or f"{name}_end"
    b = Block()
    vLane = 1
    vRF = 2
    vRN = 6
    vC1 = 10; vVar = 12
    vSt = 14; vX = 15
    vACT = 16
    vG = [[88, 104], [120, 136]]
    vU = [152, 168]
    vSA = 184
    vDA = 200; vDB = 204; vDC = 208; vDE = 212
    vPA = 216; vPB = 217; vFl = 218; vOne = 219; vPoll = 220; vZ = 221; vHo = 222; vDum = 223
    vTmp = 224
    NVG = 256
    aH = 0; aF = 144; aP = 176; NA = 248
    hfrag = lambda K, jh: f"a[{aH+8*K+4*jh}:{aH+8*K+4*jh+3}]"
    TM = "s_memrealtime" if opt.get("rtst") else "s_memtime"
    b("s_cmp_ge_u32 s2, 256")
    b(f"s_cbranch_scc1 {name}_end")
    if opt.get('rt'): rt_begin(b)
    b("s_load_dwordx4 s[4:7], s[0:1], 48")
    b("s_load_dwordx2 s[36:37], s[0:1], 64")
    b("s_load_dwordx2 s[38:39], s[0:1], 88")
    if stamps: b(f"{TM} s[48:49]")
    b(f"v_and_b32 v{vLane}, 63, v0")
    b(f"v_lshrrev_b32 v{vX}, 6, v0")
    b(f"v_readfirstlane_b32 s28, v{vX}")
    b("s_and_b32 s30, s2, 7")
    b("s_bfe_u32 s45, s2, 0x10003")
    b("s_lshr_b32 s3, s2, 4")
    b("s_mul_i32 s31, s30, 1152")
    b("s_mul_i32 s40, s45, 640")
    b("s_add_u32 s44, s31, s40")
    b("s_lshl_b32 s40, s45, 6")
    b("s_add_u32 s31, s31, s40")
    b("s_add_u32 s31, s31, 512")
    b("s_and_b32 s40, s28, 1")
    b("s_lshl_b32 s40, s40, 2")
    b("s_lshr_b32 s41, s28, 1")
    b("s_add_u32 s40, s40, s41")
    b(f"s_mul_i32 s40, s40, {4*9216}")
    b("s_add_u32 s46, s44, s40")
    b("s_mul_i32 s32, s28, 9216")
    b("s_lshl_b32 s34, s3, 2")
    b("s_add_u32 s34, s34, s28")
    b("s_mov_b32 s3, s34")
    b("s_mul_i32 s34, s34, 36864")
    t0, t1, t2, t3 = vTmp, vTmp + 1, vTmp + 2, vTmp + 3
    b(f"v_and_b32 v{t1}, 3, v{vLane}")
    b(f"v_bfe_u32 v{t3}, v{vLane}, 4, 1")
    b(f"v_lshlrev_b32 v{t0}, 1, v{t3}")
    b(f"v_xor_b32 v{t1}, v{t1}, v{t0}")
    b(f"v_lshlrev_b32 v{t1}, 4, v{t1}")
    b(f"v_lshrrev_b32 v{t2}, 5, v{vLane}")
    b(f"v_lshl_add_u32 v{t2}, v{t2}, 6, v{t1}")
    b(f"v_bfe_u32 v{t0}, v{vLane}, 2, 2")
    b(f"v_lshl_add_u32 v{t0}, v{t3}, 3, v{t0}")
    b(f"v_mul_u32_u24 v{vDA}, 9216, v{t0}")
    b(f"v_add_u32 v{vDA}, v{vDA}, v{t2}")
    for j in range(1, 4): b(f"v_add_u32 v{vDA+j}, {j*(32*9216 - 1024)}, v{vDA}")
    b(f"v_lshrrev_b32 v{t0}, 4, v{vLane}")
    b(f"v_and_b32 v{vHo}, 15, v{vLane}")
    b(f"v_lshlrev_b32 v{vHo}, 4, v{vHo}")
    b(f"v_lshl_add_u32 v{vHo}, v{t0}, 9, v{vHo}")
    b("s_waitcnt lgkmcnt(0)")
    srd(b, 8, 4, 576 * 9216)
    srd(b, 20, 38, 0x800000)

    NST = 27
    ST = []
    for sc in range(4):
        ST += [('G', sc, 0), ('U', sc, 0), ('G', sc, 1), ('U', sc, 1)] if (sc == 0 and opt.get('alt0', 1)) else [('G', sc, 0), ('G', sc, 1), ('U', sc, 0), ('U', sc, 1)]
    ST += [('Gh', 0, 0), ('Uh', 0, 0)]
    ST += [('own', 0, 0), ('own', 1, 0), ('own', 2, 0), ('own', 3, 0), ('one', 0, 0), ('par', 0, 0), ('par', 1, 0), ('par', 2, 0), ('par', 3, 0)]
    def dma_list(s):
        slot = (s % 4) * SLOT
        kind, n, hi = ST[s]
        if kind in 'GU':
            sr, vo, ba, b8, c, stride = (8 if kind == 'G' else 12), vDA, 's46', None, n * 128 + hi * 288 * 9216, 9216
        elif kind in ('Gh', 'Uh'):
            sr, vo, ba, b8, c, stride = (8 if kind == 'Gh' else 12), vDB, 's47', None, 0, 9216
        elif kind == 'own': sr, vo, ba, b8, c, stride = 16, vDC, 's36', 's37', n * 128, 1152
        elif kind == 'par': sr, vo, ba, b8, c, stride = 16, vDC, 's92', 's93', n * 128, 1152
        else: sr, vo, ba, b8, c, stride = 16, vDE, 's94', 's95', 0, 1152
        if stamps or opt.get('rt'):
            ba = {'s92': 's0', 's94': 'vcc_lo'}.get(ba, ba) if False else ba
        l = []
        for i in range(9):
            it = []
            if i % 4 == 0:
                it.append(Ins(f"s_add_u32 m0, s32, {slot + i * 1024}"))
                if i == 8 and b8: it.append(Ins(f"s_add_u32 s41, {b8}, {c}"))
                else: it.append(Ins(f"s_add_u32 s41, {ba}, {c + i * 32 * stride}"))
            off = f" offset:{(i%4)*1024}" if i % 4 else ""
            it.append(Ins(f"buffer_load_dwordx4 v{vo+i%4}, s[{sr}:{sr+3}], s41 offen{off}{' nt' if opt.get('nt0', 99) <= s < opt.get('nt1', 99) else ''} lds", tok=f"dma{s}"))
            l.append(it)
        return l
    for it in dma_list(0):
        for i in it: b.add(i)
    def hload(n):
        K, jh = n // 2, n % 2
        l = []
        if n == 0: l.append(Ins(f"s_add_u32 s42, s34, {H_OFF}"))
        elif n % 4 == 0: l.append(Ins("s_add_u32 s42, s42, 4096"))
        o = (K % 2) * 2048 + jh * 256
        off = f" offset:{o}" if o else ""
        l.append(Ins(f"buffer_load_dwordx4 {hfrag(K, jh)}, v{vHo}, s[20:23], s42 offen{off}"))
        return l
    HPRE = opt.get('hpre', 3)
    for n in range(HPRE):
        for i in hload(n): b.add(i)
    srd(b, 12, 6, 576 * 9216)
    srd(b, 16, 36, 4608 * 1152)
    srd(b, 24, 38, A_REL + 256 * 73728, P_OFF)
    b(f"v_lshlrev_b32 v{vSt}, 4, v{vLane}")
    b(f"v_and_b32 v{vRF}, 3, v{vLane}")
    b(f"v_lshlrev_b32 v{vRF}, 3, v{vRF}")
    b(f"v_bfe_u32 v{t0}, v{vLane}, 2, 3")
    b(f"v_lshl_add_u32 v{vRF}, v{t0}, 6, v{vRF}")
    b(f"v_lshl_add_u32 v{vRF}, v{t3}, 5, v{vRF}")
    b(f"v_lshrrev_b32 v{t0}, 5, v{vLane}")
    b(f"v_lshl_add_u32 v{vRN}, v{t0}, 9, v{vRF}")
    b(f"v_mul_u32_u24 v{t0}, 9216, v{t0}")
    b(f"v_add_u32 v{vRF}, v{vRF}, v{t0}")
    for r, d in ((vRF, 2 * SLOT), (vRN, 49152)):
        b(f"v_xor_b32 v{r+1}, 32, v{r}")
        b(f"v_add_u32 v{r+2}, {d}, v{r}")
        b(f"v_add_u32 v{r+3}, {d}, v{r+1}")
    def late():
        l = Block()
        l(f"v_bfe_u32 v{t0}, v{vLane}, 2, 3")
        l(f"v_mul_u32_u24 v{vDC}, 1152, v{t0}")
        l(f"v_add_u32 v{vDC}, v{vDC}, v{t2}")
        for j in range(1, 4): l(f"v_add_u32 v{vDC+j}, {j*(32*1152 - 1024)}, v{vDC}")
        l(f"v_lshrrev_b32 v{t0}, 2, v{vLane}")
        l(f"v_mul_u32_u24 v{vDE}, 1152, v{t0}")
        l(f"v_add_u32 v{vDE}, v{vDE}, v{t1}")
        for j in range(1, 4): l(f"v_add_u32 v{vDE+j}, {j*(32*1152 - 1024)}, v{vDE}")
        l(f"v_lshrrev_b32 v{t0}, 4, v{vLane}")
        l(f"v_bfe_u32 v{t3}, v{vLane}, 2, 2")
        l(f"v_lshl_add_u32 v{t0}, v{t0}, 3, v{t3}")
        l(f"v_mul_u32_u24 v{vDB}, 9216, v{t0}")
        l(f"v_add_u32 v{vDB}, v{vDB}, v{t1}")
        for j in range(1, 4): l(f"v_add_u32 v{vDB+j}, {j*(32*9216 - 1024)}, v{vDB}")
        l("s_lshr_b32 s40, s28, 1")
        l("s_mul_i32 s40, s40, 72")
        l("s_and_b32 s43, s28, 1")
        l("s_add_u32 s40, s40, s43")
        l(f"s_mul_i32 s40, s40, {4*9216}")
        l("s_add_u32 s47, s31, s40")
        l(f"s_mul_i32 s29, s30, {576*1152}")
        l(f"s_mul_i32 s33, s45, {288*1152}")
        l("s_add_u32 s33, s33, s29")
        l("s_mul_i32 s40, s45, 640")
        l(f"s_mul_i32 s43, s28, {8*1152}")
        l("s_add_u32 s40, s40, s43")
        l("s_add_u32 s40, s40, s29")
        for (d, flip) in ((36, 0), (92, 1)):
            l(f"s_xor_b32 s43, s45, {flip}")
            l(f"s_mul_i32 s{d}, s43, {320*1152}")
            l(f"s_add_u32 s{d}, s{d}, s40")
            l(f"s_mul_i32 s{d+1}, s43, {32*1152}")
            l(f"s_add_u32 s{d+1}, s{d+1}, s40")
            l(f"s_add_u32 s{d+1}, s{d+1}, {256*1152}")
        l("s_lshl_b32 s40, s45, 6")
        l("s_add_u32 s40, s40, s29")
        l("s_and_b32 s43, s28, 1")
        l(f"s_mul_i32 s43, s43, {16*1152}")
        l("s_add_u32 s40, s40, s43")
        l("s_add_u32 s40, s40, 512")
        l("s_lshr_b32 s43, s28, 1")
        l("s_xor_b32 s43, s43, s45")
        l(f"s_mul_i32 s94, s43, {320*1152}")
        l("s_add_u32 s94, s94, s40")
        l(f"s_mul_i32 s95, s43, {32*1152}")
        l("s_add_u32 s95, s95, s40")
        l(f"s_add_u32 s95, s95, {256*1152}")
        l("s_mul_i32 s38, s2, 73728")
        l("s_mul_i32 s40, s28, 18432")
        l(f"s_add_u32 s40, s40, {A_REL}")
        l("s_add_u32 s38, s38, s40")
        l("s_xor_b32 s39, s2, 8")
        l("s_mul_i32 s39, s39, 73728")
        l("s_add_u32 s39, s39, s40")
        l("s_mov_b32 s35, s39")
        l(f"v_lshlrev_b32 v{vX}, 7, v{vLane}")
        l(f"s_mul_i32 s40, s3, {9*9216}")
        l(f"v_mul_u32_u24 v{vPA}, 9216, v{vLane}")
        l(f"v_add_u32 v{vPA}, s40, v{vPA}")
        l("s_mul_i32 s40, s3, 5184")
        l(f"v_add_u32 v{vPB}, s40, v{vX}")
        l(f"v_cmp_lt_u32 vcc, 8, v{vLane}")
        l(f"v_mov_b32 v{t0}, 0x40000000")
        l(f"v_mov_b32 v{vZ}, 0")
        l(f"v_cndmask_b32 v{vPA}, v{vPA}, v{t0}, vcc")
        l(f"v_cndmask_b32 v{vPB}, v{vPB}, v{t0}, vcc")
        l("s_mul_i32 s40, s3, 768")
        l(f"v_add_u32 v{vX}, s40, v{vX}")
        l(f"v_cmp_lt_u32 vcc, 5, v{vLane}")
        l("s_nop 0")
        l(f"v_cndmask_b32 v{vX}, v{vX}, v{t0}, vcc")
        l(f"v_cmp_lt_u32 vcc, 0, v{vLane}")
        l(f"v_mov_b32 v{vOne}, 1")
        l("s_lshl_b32 s29, s2, 7")
        l(f"v_cndmask_b32 v{vFl}, v{vZ}, v{t0}, vcc")
        l(f"s_add_u32 s29, s29, {FL_OFF}")
        l("s_xor_b32 s30, s29, 1024")
        return l.ins
    for i in late(): b.add(i)
    if opt.get('pfcode', 1):
        code_srd(b, 4, f"{name}_body", code_end, f"{name}_pc")
    b(f"{name}_body:")

    M = []
    stage_start = {}; done = {}; first = {}; hpos = {}
    own = lambda K, jh: f"v[{vACT+8*K+4*jh}:{vACT+8*K+4*jh+3}]"
    par = lambda K, jh: f"a[{aP+8*K+4*jh}:{aP+8*K+4*jh+3}]"
    pacc = {1: (f"v{vG[1][0]}", f"v{vG[1][1]}"), 2: (f"v{vG[0][1]}", f"v{vU[1]}"), 3: (f"v{vG[0][0]}", f"v{vU[0]}"), 0: ("a0", "a16")}
    seen_h = set()
    chain_last = {}
    for s in range(NST):
        kind, n, hi = ST[s]
        stage_start[s] = len(M)
        sbase = (s % 2) * SLOT; bi = 2 * ((s % 4) // 2)
        if kind in ('G', 'U', 'own', 'par'):
            kmaj = (kind in 'GU' and hi not in seen_h) or s == 18
            order = [(ct, K) for K in range(9) for ct in range(2)] if kmaj else [(ct, K) for ct in range(2) for K in range(9)]
            for ct, K in order:
                if kind == 'G': acc, key, B, c0 = f"v{vG[n%2][ct]}", ('G', 2*n+ct), (lambda jh: hfrag(9*hi+K, jh)), (K == 0 and hi == 0)
                elif kind == 'U': acc, key, B, c0 = f"v{vU[ct]}", ('U', 2*n+ct), (lambda jh: hfrag(9*hi+K, jh)), (K == 0 and hi == 0)
                elif kind == 'own': acc, key, B, c0 = pacc[n][ct], None, (lambda jh: own(K, jh)), K == 0
                else: acc, key, B, c0 = pacc[n][ct], None, (lambda jh: par(K, jh)), False
                if c0 and key: first[key] = len(M)
                for cb in range(2):
                    o = sbase + K * 1024 + ct * 512
                    M.append(dict(acc=acc, cb=cb, rd=((vRF + bi + cb, o), (vRF + bi + cb, o + 18432)), b=[B(0), B(1)], c0=c0, stage=s))
                if key and hi == 1 and K == 8: done[key] = len(M) - 1
                if kind == 'par' and K == 8: chain_last[(n, ct)] = len(M) - 1
                if kind in 'GU' and hi not in seen_h and ct == 1: hpos[9*hi+K] = len(M) - 1
            if kind in 'GU': seen_h.add(hi)
        else:
            acc = {'Gh': f"v{vG[0][0]}", 'Uh': f"v{vU[0]}", 'one': "a32"}[kind]
            if kind != 'one': first[(kind[0], 8)] = len(M)
            for K in range(18):
                B = (lambda jh: hfrag(K, jh)) if kind != 'one' else (lambda jh: own(K, jh) if K < 9 else par(K - 9, jh))
                for cb in range(2):
                    o = (s % 4) * SLOT + (K % 9) * 1024 + (K // 9) * 18432
                    sel = lambda a: (vRN + cb, a) if a < 65536 else (vRN + 2 + cb, a - 49152)
                    M.append(dict(acc=acc, cb=cb, rd=(sel(o), sel(o + 9216)), b=[B(0), B(1)], c0=(K == 0), stage=s))
            if kind == 'one': chain_last[('one', 0)] = len(M) - 1
            else: done[(kind[0], 8)] = len(M) - 1
    NM = len(M)
    gaps = [[] for _ in range(NM + 1)]
    cost = [0] * (NM + 1)
    def put(g, inss, c=None):
        g = min(g, NM - 1)
        if not isinstance(inss, list): inss = [inss]
        gaps[g + 1].append(inss)
        for i in inss:
            cost[g + 1] += (8 if i.kind == 'trans' else (0 if i.kind in ('salu', 'ctl', 'smem', 'label') else 4)) if c is None else c
    LA = opt.get('la', 6)
    BARL = opt.get('barl', 4)
    bar_pos = {s: stage_start[s] - BARL for s in range(1, NST)}
    bar_pos[0] = -1
    bar_ins = {}
    for s in range(NST):
        needs = [f"dma{s}"] + ([f"rd{g}" for g in range(NM) if M[g]['stage'] == s - 1] if s else [])
        if stamps and s >= 1 and not opt.get('fine') and s < 22:
            put(bar_pos[s] - 2, Ins(f"{TM} s[{48+2*s}:{49+2*s}]", tok=f"st{s}"))
            needs = needs + [f"st{s}"]
        bar_ins[s] = Ins("s_barrier", needs=needs)
        put(bar_pos[s], [bar_ins[s]], 8)
    if stamps and opt.get('fine'):
        for k in range(1, 22):
            put(-1 + opt['fine'] * (k - 1), [Ins(f"{TM} s[{48+2*k}:{49+2*k}]"), Ins("s_waitcnt lgkmcnt(0)")])
    nrd = {}
    for g in range(NM):
        buf = aF + 4 * (g % 8)
        M[g]['a'] = f"a[{buf}:{buf+3}]"
        (base, o0), (base1, o1) = M[g]['rd']
        assert o1 < 65536 and o0 < 65536
        p = max(g - LA, bar_pos[M[g]['stage']])
        while nrd.get(p, 0) >= (2 if p not in bar_pos.values() else (1 if p >= 0 else 4)): p += 1
        assert g - 8 < p < g, (g, p)
        nrd[p] = nrd.get(p, 0) + 1
        M[g]['rp'] = p
        if opt.get('nord') and g > 100: continue
        put(p, Ins(f"ds_read_b64_tr_b16 a[{buf}:{buf+1}], v{base} offset:{o0}", tok=f"rd{g}"))
        put(p, Ins(f"ds_read_b64_tr_b16 a[{buf+2}:{buf+3}], v{base1} offset:{o1}", tok=f"rd{g}"))
    seq = []
    d1, d2, d3 = dma_list(1), dma_list(2), dma_list(3)
    hs = [hload(n) for n in range(HPRE, 36)]
    n1 = 18 - HPRE
    a_, rest = hs[:n1], hs[n1:]
    for _ in range(opt.get('hlead', 6)): seq.append(a_.pop(0))
    while a_ or d1:
        if a_: seq.append(a_.pop(0))
        if d1: seq.append(d1.pop(0))
    if opt.get('alt0', 1):
        seq += d2 + rest + d3
    else:
        while rest or d2:
            for _ in range(2):
                if rest: seq.append(rest.pop(0))
            if d2: seq.append(d2.pop(0))
        seq += d3
    pos = -1
    for k, it in enumerate(seq):
        put(pos, it)
        if k >= opt.get('burst', 4):
            pos += opt.get('pace', 3) if (opt.get('alt0', 1) and opt.get('p0', 32) <= pos < opt.get('p1', 68)) else 1
    prev_end = pos
    DSTEP = opt.get('dstep', 3)
    PUB = stage_start[19] + opt.get('pub', 24)
    for s in range(4, NST):
        items = dma_list(s)
        g0 = max(bar_pos[s - 3] + 5, prev_end + 3)
        step = DSTEP if s > 5 else 2
        if s == 22: g0 = PUB + 2; step = 1
        for k, it in enumerate(items):
            if opt.get('nodma'): continue
            if len(it) > 1 and step > 2:
                put(g0 + k * step - 2, it[0]); put(g0 + k * step - 1, it[1]); put(g0 + k * step, it[2])
            elif len(it) > 1 and step > 1:
                put(g0 + k * step - 1, it[0]); put(g0 + k * step - 1, it[1]); put(g0 + k * step, it[2])
            else: put(g0 + k * step, it)
        prev_end = g0 + 8 * step
        assert prev_end < bar_pos[s] - 8, (s, prev_end, bar_pos[s])
    if opt.get('pfwd', 1):
        todo = []
        for sc in range(opt.get('pf0', 2), 4): todo += [(8, vPA, 's44', sc * 128), (12, vPA, 's44', sc * 128)]
        todo += [(8, vPA, 's31', 0), (12, vPA, 's31', 0)]
        for k in range(5): todo.append((16, vPB, 's33', k * 1152))
        if opt.get('pfwd') == 2: todo = todo[-5:]
        for k, (sr, vo, sb, c) in enumerate(todo):
            pos = opt.get('pfpos', [2.8, 3.3, 3.8, 4.4, 5.0, 5.6, 6.2, 6.8, 7.4, 8.0, 8.5])[k]
            g = stage_start[int(pos)] + int((pos % 1) * 36)
            put(g - 1, Ins(f"s_add_u32 s3, {sb}, {c}"))
            put(g, Ins(f"buffer_load_dword v{vDum}, v{vo}, s[{sr}:{sr+3}], s3 offen", tok='touch'))
    if opt.get('pfcode', 1):
        for st in opt.get('pfcs', (3, 9, 14)):
            put(bar_pos[st] - 3, Ins(f"buffer_load_dword v{vDum}, v{vX}, s[4:7], 0 offen", tok='touch'))
    VQ = []
    def spread(inss, g_lo, g_hi, los=None):
        tot = sum(8 if i.kind == 'trans' else 4 for i in inss)
        base = sum(cost[g + 1] for g in range(g_lo, g_hi + 1))
        level = (tot + base) / (g_hi - g_lo + 1)
        g = g_lo; carry = 0.0
        for k, i in enumerate(inss):
            c = 8 if i.kind == 'trans' else 4
            while g < g_hi and cost[g + 1] + c > level + carry + 2:
                carry += level - cost[g + 1]
                g += 1
            cost[g + 1] += c
            lo = max(g_lo, los[k] if los else g_lo)
            assert g >= lo, (k, g, lo)
            VQ.append([i, g, lo, g_hi])
    for K in range(18):
        l = []
        for jh in range(2):
            for j in range(2):
                hr = f"a[{aH+8*K+4*jh+2*j}:{aH+8*K+4*jh+2*j+1}]"
                acc = vSA + 8 * jh + 4 * j
                l.append(Ins(f"v_mfma_f32_4x4x4_16b_bf16 v[{acc}:{acc+3}], {hr}, {hr}, {'0' if K == 0 else f'v[{acc}:{acc+3}]'}"))
        put(hpos[K], l, 8)
    fin = [Ins("s_mov_b32 vcc_lo, 0xaaaaaaaa"), Ins("s_mov_b32 vcc_hi, 0xaaaaaaaa")]
    J = (0, 1)
    for jh in J:
        for i in range(4): fin.append(Ins(f"v_add_f32 v{vSA+8*jh+i}, v{vSA+8*jh+i}, v{vSA+8*jh+4+i}"))
    for jh in J:
        q = vSA + 8 * jh
        fin += [Ins(f"v_cndmask_b32 v{q}, v{q}, v{q+1}, vcc"), Ins(f"v_cndmask_b32 v{q+2}, v{q+2}, v{q+3}, vcc")]
    fin += [Ins("s_mov_b32 vcc_lo, 0xcccccccc"), Ins("s_mov_b32 vcc_hi, 0xcccccccc")]
    for f in ["v_cndmask_b32 v{q}, v{q}, v{q2}, vcc", "v_mov_b32 v{q1}, v{q}", "v_mov_b32 v{var}, 0x3727c5ac",
              "v_permlane32_swap_b32 v{q1}, v{q}", "v_add_f32 v{q}, v{q1}, v{q}", "v_mov_b32 v{q1}, v{q}", "v_nop",
              "v_permlane16_swap_b32 v{q1}, v{q}", "v_add_f32 v{q}, v{q1}, v{q}",
              "v_fmac_f32 v{var}, 0x3ae38e39, v{q}", "v_rsq_f32 v{c1}, v{var}", "v_mul_f32 v{c1}, 0xbfb8aa3b, v{c1}"]:
        for jh in J:
            q = vSA + 8 * jh
            fin.append(Ins(f.format(q=q, q1=q + 1, q2=q + 2, var=vVar + jh, c1=vC1 + jh)))
    fin_lo = hpos[17] + 1
    fin_hi = fin_lo + opt.get('finl', 10)
    spread(fin, fin_lo, fin_hi)
    def w1(G):
        l = []
        for e0 in range(0, 16, 4):
            T = vTmp + (e0 & 4); jh = e0 // 8
            for e in range(4): l.append(Ins(f"v_mul_f32 v{T+e}, v{G+e0+e}, v{vC1+jh}"))
            for e in range(4): l.append(Ins(f"v_exp_f32 v{T+e}, v{T+e}"))
            for e in range(4): l.append(Ins(f"v_fma_f32 v{T+e}, v{T+e}, v{vVar+jh}, v{vVar+jh}"))
            for e in range(4): l.append(Ins(f"v_rcp_f32 v{T+e}, v{T+e}"))
            for e in range(4): l.append(Ins(f"v_mul_f32 v{G+e0+e}, v{G+e0+e}, v{T+e}"))
        return l
    def w2(ch, G, U):
        l = []
        for e0 in range(0, 16, 4):
            for e in range(e0, e0 + 4): l.append(Ins(f"v_mul_f32 v{G+e}, v{G+e}, v{U+e}"))
            for e in (e0, e0 + 2): l.append(Ins(f"v_cvt_pk_bf16_f32 v{vACT + 8*ch + e//2}, v{G+e}, v{G+e+1}"))
        return l
    ready = {}
    if True:
        lo = fin_hi + 1
        for sc in range(4):
            c0, c1 = 2 * sc, 2 * sc + 1
            G0, G1 = vG[sc % 2]
            lo = max(lo, done[('G', c0)] + 3)
            nxtU = first[('U', c0 + 2)]
            hi = min(nxtU - 2, (done[('G', c0 + 2)] + opt.get('vover', 8)))
            a, c = w1(G0) + w1(G1), w2(c0, G0, vU[0])
            los = [lo] * 80 + [done[('G', c1)] + 3] * 80 + [done[('U', c0)] + 3] * 24 + [done[('U', c1)] + 3] * 24
            spread(a + c + w2(c1, G1, vU[1]), lo, hi, los)
            ready[sc] = hi + 1
            lo = hi + 1
        lo = max(lo, done[('G', 8)] + 3)
        a = w1(vG[0][0])
        spread(a + w2(8, vG[0][0], vU[0]), lo, stage_start[18] + 29, [lo] * 80 + [done[('U', 8)] + 3] * 24)
        ready[4] = stage_start[18] + 30
    sstep = opt.get('sstep', [36, 30, 20, 14, 1])
    lastg = 0
    for fr in range(18):
        g = ready[fr // 4] + (fr % 4) * sstep[fr // 4]
        spos = opt.get('spos', [9.6,10.1,10.6,11.1,11.6,12.1,12.6,13.1,14.2,14.7,15.2,15.7,17.0,17.4,17.8,18.2,18.85,18.9])
        g = max(ready[fr // 4], stage_start[int(spos[fr])] + int((spos[fr] % 1) * 36))
        if fr % 4 == 0 and fr: put(g - 1, Ins("s_add_u32 s38, s38, 4096"))
        off = f" offset:{(fr%4)*1024}" if fr % 4 else ""
        if not opt.get('noas'): put(g, Ins(f"buffer_store_dwordx4 v[{vACT+4*fr}:{vACT+4*fr+3}], v{vSt}, s[24:27], s38 offen{off}{opt.get('asf', ' sc1')}", tok=f"as{fr}"))
        assert g > lastg + (1 if fr % 4 == 0 else 0); lastg = g
    SS = lambda x: stage_start[int(x)] + int(round((x % 1) * 36))
    for val, PA, n in ((1, opt.get('pa1', 15), 8), (2, opt.get('pa2', 18), 12)):
        bar_ins[PA].needs += [f"as{fr}" for fr in range(n)]
        put(bar_pos[PA] + 1, Ins(f"buffer_store_dword v{vOne}, v{vFl}, s[20:23], s29 offen sc1"))
        put(bar_pos[PA] + 6, Ins(f"v_mov_b32 v{vOne}, {val + 1}"))
    put(PUB, [Ins("s_waitcnt vmcnt(0)"), Ins("s_barrier"),
              Ins(f"buffer_store_dword v{vOne}, v{vFl}, s[20:23], s29 offen sc1")])
    rounds = [(1, SS(opt.get('pa1', 15) + 1.0), SS(opt.get('pa1', 15) + 1.7), range(8), opt.get('astep', 10)),
              (2, SS(19.0), PUB + 1, range(8, 12), opt.get('bstep', 9)),
              (3, SS(opt.get('poll', 21.0)), SS(opt.get('chk', 21.6)), range(12, 18), opt.get('cstep', 3))]
    for val, POLL, CHK, frs, step in rounds:
        put(POLL, Ins(f"buffer_load_dword v{vPoll}, v{vZ}, s[20:23], s30 offen sc1"))
        put(CHK, [Ins(f"v_readfirstlane_b32 s40, v{vPoll}"), Ins(f"s_cmp_ge_u32 s40, {val}"),
                  Ins(f"s_cbranch_scc0 {name}_spin{val}"), Ins(f"{name}_go{val}:")])
        g = CHK + 2
        for fr in frs:
            if PUB - 24 < g <= PUB + 10: g = PUB + 11
            if fr % 4 == 0 and fr: put(g - 1, Ins("s_add_u32 s39, s39, 4096"))
            off = f" offset:{(fr%4)*1024}" if fr % 4 else ""
            if not opt.get('noal'): put(g, Ins(f"buffer_load_dwordx4 {par(fr // 2, fr % 2)}, v{vSt}, s[24:27], s39 offen{off} sc1"))
            g += step
        assert val == 3 or g - step < rounds[val][2], g
    vO = [vDA, vDA + 1, vDA + 2]; vFo = vDA + 3; vHa = vDB; vOa = vDB + 1; vMa = vDB + 2; vMu = vDB + 3; vLw = vPA
    vD = 152; vHq = 232; vHf = 16
    f = Block()
    u0, u1 = vPB, vX
    f("s_and_b32 s31, s2, 7")
    f("s_lshr_b32 s33, s31, 1")
    f("s_and_b32 s34, s31, 1")
    f("s_and_b32 s3, s2, 0xf8")
    f("s_xor_b32 s44, s3, 8")
    f("s_mul_i32 s44, s44, 73728")
    f("s_mul_i32 s12, s33, 18432")
    f("s_add_u32 s44, s44, s12")
    f("s_lshl_b32 s12, s34, 10")
    f("s_add_u32 s44, s44, s12")
    f("s_lshl_b32 s12, s28, 11")
    f("s_add_u32 s44, s44, s12")
    f("s_lshl_b32 s3, s3, 4")
    f(f"s_add_u32 s3, s3, {FG_OFF}")
    f("s_add_u32 s12, s28, 1")
    f("s_lshr_b32 s12, s12, 2")
    f("s_lshl_b32 s12, s12, 29")
    f(f"v_add_u32 v{vO[0]}, s12, v{vSt}")
    f(f"v_add_u32 v{vO[1]}, 6144, v{vO[0]}")
    f(f"v_add_u32 v{vO[2]}, 12288, v{vO[0]}")
    f(f"v_and_b32 v{vFo}, 7, v{vLane}")
    f(f"v_lshlrev_b32 v{vFo}, 2, v{vFo}")
    f(f"v_bfe_u32 v{u0}, v{vLane}, 4, 1")
    f(f"v_lshrrev_b32 v{u1}, 5, v{vLane}")
    f(f"v_lshl_add_u32 v{u0}, v{u0}, 1, v{u1}")
    f(f"v_and_b32 v{u1}, 15, v{vLane}")
    f(f"v_lshlrev_b32 v{vHa}, 4, v{u1}")
    f(f"v_lshl_add_u32 v{vHa}, v{u0}, 9, v{vHa}")
    f(f"v_lshlrev_b32 v{vMa}, 2, v{u1}")
    f("s_mov_b32 s12, 73728")
    f(f"v_mul_lo_u32 v{vOa}, v{u1}, s12")
    f(f"v_lshl_add_u32 v{vOa}, v{u0}, 4, v{vOa}")
    f(f"v_mov_b32 v{vLw}, {4*SLOT}")
    f("s_lshl_b32 s12, 1, s31")
    f(f"v_mov_b32 v{u0}, s12")
    f(f"ds_write_b32 v{vLw}, v{u0}")
    f("s_lshr_b32 s47, s2, 4")
    f("s_lshl_b32 s47, s47, 2")
    f("s_add_u32 s47, s47, s33")
    f("s_mul_i32 s12, s45, 10")
    f("s_add_u32 s12, s12, s28")
    f("s_add_u32 s5, s12, 2")
    f("s_add_u32 s6, s12, 5")
    f("s_sub_u32 s4, s12, 1")
    f("s_mul_i32 s7, s45, 9")
    f("s_sub_u32 s7, 9, s7")
    f("s_min_u32 s12, s28, 1")
    f("s_sub_u32 s12, 1, s12")
    f("s_mul_i32 s7, s7, s12")
    f("s_add_u32 s4, s4, s7")
    f("s_mul_i32 s46, s47, 36864")
    f("s_lshl_b32 s12, s34, 8")
    f("s_add_u32 s46, s46, s12")
    f(f"s_add_u32 s46, s46, {H_OFF}")
    for r in range(3):
        f(f"s_lshl_b32 s12, s{4+r}, 11")
        f("s_add_u32 s12, s12, s46")
        f(f"buffer_load_dwordx4 v[{vHq+4*r}:{vHq+4*r+3}], v{vHa}, s[20:23], s12 offen")
    f("s_lshl_b32 s7, s47, 7")
    f("s_lshl_b32 s12, s34, 6")
    f("s_add_u32 s7, s7, s12")
    f(f"s_add_u32 s7, s7, {MU_OFF}")
    f(f"buffer_load_dword v{vMu}, v{vMa}, s[20:23], s7 offen")
    f(f"s_mul_i32 s34, s34, {16*73728}")
    f("s_mul_i32 s47, s47, 1152")
    f("s_add_u32 s47, s47, s34")
    spread(f.ins, SS(20.1), SS(21.9))
    f = Block()
    for r in range(3):
        f(f"s_lshl_b32 s{4+r}, s{4+r}, 6")
        f(f"s_add_u32 s{92+r}, s{4+r}, s47")
    f("s_lshl_b32 s31, s31, 2")
    f("s_add_u32 s29, s3, s31")
    f("s_mov_b32 s13, 0x40000000")
    f("s_mov_b32 s46, 0x00003f80")
    f("s_mov_b32 s31, 0x3f800000")
    f("s_mov_b32 s8, s14\ns_mov_b32 s9, s15")
    f(f"s_mov_b32 s10, {2048*1152}")
    for r in range(3):
        for e in range(4):
            f(f"v_lshlrev_b32 v{vHf+8*r+2*e}, 16, v{vHq+4*r+e}")
            f(f"v_and_b32 v{vHf+8*r+2*e+1}, 0xffff0000, v{vHq+4*r+e}")
        for i in range(8): f(f"v_add_f32 v{vHf+8*r+i}, v{vHf+8*r+i}, v{vMu}")
        for i in range(4): f(f"v_permlane16_swap_b32 v{vHf+8*r+i}, v{vHf+8*r+4+i}")
    put(bar_pos[23] - 2, Ins("s_load_dwordx2 s[14:15], s[0:1], 72", tok="outp"))
    bar_ins[23].needs.append("outp")
    late_fin = f.ins
    tail = []
    order = [('one', 0)] + [(pr, ct) for pr in range(4) for ct in range(2)]
    for n, key in enumerate(order):
        pk = vSA + 8 * (n % 2)
        l = []
        acc = "a32" if key[0] == 'one' else pacc[key[0]][key[1]]
        if n % 2 == 0: l.append(Ins(f"s_add_u32 s43, s35, {n * 2048}"))
        o0 = (n % 2) * 2048
        r0 = int(acc[1:])
        for hlf in range(2):
            src = r0 + 8 * hlf
            if acc[0] == 'a':
                for e in range(8): l.append(Ins(f"v_accvgpr_read_b32 v{vTmp+e}, a{src+e}"))
                src = vTmp
            for e in range(4):
                l.append(Ins(f"v_cvt_pk_bf16_f32 v{pk + 4*hlf + e}, v{src + 2*e}, v{src + 2*e + 1}"))
            o = o0 + hlf * 1024
            off = f" offset:{o}" if o else ""
            l.append(Ins(f"buffer_store_dwordx4 v[{pk+4*hlf}:{pk+4*hlf+3}], v{vSt}, s[24:27], s43 offen{off}{stflag}", tok=f"ps{n}"))
        if n < 8:
            lo = chain_last[key] + 2
            spread(l, lo, lo + 14)
        else:
            tail = l
    spread(late_fin, SS(23.9), SS(25.0))
    put(bar_pos[26] - 2, Ins(f"v_mov_b32 v{vOne}, 1"))
    bar_ins[26].needs += [f"ps{k}" for k in range(3)]
    put(bar_pos[26] + 1, Ins(f"buffer_store_dword v{vOne}, v{vFl}, s[20:23], s29 offen sc1"))
    if opt.get('e2'):
        x = opt['e2']
        put(SS(x) - 2, Ins(f"v_mov_b32 v{vOne}, 2"))
        put(SS(x), [Ins("s_barrier", needs=[f"ps{k}" for k in range(6)]),
                    Ins(f"buffer_store_dword v{vOne}, v{vFl}, s[20:23], s29 offen sc1")])
    put(SS(26.8), Ins(f"v_mov_b32 v{vOne}, 3"))
    PREG = list(range(40, 88, 4)) + list(range(120, 152, 4)) + list(range(232, 248, 4))
    put(SS(opt.get('pap', 26.5)), Ins(f"buffer_load_dword v{vPoll}, v{vFo}, s[20:23], s3 offen sc1"))
    MSK = [16, 18, 32]
    look = []
    for r in range(3): look.append(Ins(f"v_cmp_lt_u32 s[{MSK[r]}:{MSK[r]+1}], {r}, v{vPoll}"))
    look2 = []
    for r in range(3):
        for p in range(8):
            q = PREG[8 * r + p]
            look2 += [Ins(f"s_add_u32 s12, s44, {p * 73728}"), Ins(f"s_bitcmp1_b32 s{MSK[r]}, {p}"), Ins("s_cselect_b32 s12, s12, s13"),
                      Ins(f"buffer_load_dwordx4 v[{q}:{q+3}], v{vO[r]}, s[24:27], s12 offen sc1", tok='late')]
    for grp in gaps[0]:
        for i in grp: b.add(i)
    WB = opt.get('wb', 2)
    ADV = opt.get('adv', 3); LAG = opt.get('lag', 2)
    isS = lambda i: i.kind in ('salu', 'ctl', 'smem', 'label', 'nop')
    isM = lambda i: i.kind in ('ds', 'vmem', 'dma')
    units = lambda i: 0 if isS(i) else (2 if i.kind in ('trans', 'mfma') else 1)
    VQ.sort(key=lambda e: e[1])
    over = 0
    waited = -1
    orig = [e[0] for e in VQ]
    bounds = {id(e[0]): (e[2], e[3]) for e in VQ}
    slot_of = {}
    for g in range(NM):
        m = M[g]
        H = [dict(s=[], m=[], v=[], x=[]), dict(s=[], m=[], v=[], x=[])]
        used = lambda h: sum(units(i) for i in H[h]['m'] + H[h]['v'] + H[h]['x'])
        singles = []
        for grp in gaps[g + 1]:
            if len(grp) > 1 or grp[0].mn == 's_barrier':
                if any(i.kind == 'mfma' for i in grp): H[1]['x'] += grp
                else: H[0]['s'] += grp
            else: singles.append(grp[0])
        grp_units = sum(units(i) for i in H[0]['s'])
        mems = [i for i in singles if isM(i)]
        for i in singles:
            if isS(i): H[0 if not H[0]['s'] else 1]['s'].append(i)
            elif not isM(i): H[1]['v'].append(i)
        emitted = []
        def pick(want):
            skipped = []
            for k, e in enumerate(VQ[:10]):
                i = e[0]
                ok = e[2] <= g and e[1] <= g + ADV and want(i)
                if ok:
                    for q in skipped + emitted:
                        dep = (q.wr & (i.rd | i.wr)) or (i.wr & q.rd)
                        if q in emitted: dep = (q.wr & i.rd) and not (isS(q) and not isS(i) and False)
                        if dep - {'exec'} if isinstance(dep, set) else dep: ok = False; break
                if ok:
                    VQ.pop(k); return i
                skipped.append(i)
            return None
        free = 4 - grp_units - len(mems) - used(0) - used(1)
        nxt_trans = bool(VQ) and VQ[0][0].kind == 'trans' and VQ[0][2] <= g and VQ[0][1] <= g + ADV
        if nxt_trans and free >= 2 and grp_units + len(mems) <= 2 and used(1) == 0:
            H[0]['m'] += mems
            t = pick(lambda i: i.kind == 'trans')
            if t: H[1]['v'].append(t); emitted.append(t)
        else:
            for i in mems:
                h = 0 if used(0) + grp_units <= used(1) and not H[1]['m'] else 1
                if used(0) + grp_units < 2 and used(1) >= 2: h = 0 if not H[1]['m'] else 1
                H[h]['m'].append(i)
            if len(mems) > 2:
                k = (len(mems) + 1) // 2
                H[0]['m'], H[1]['m'] = mems[:k], mems[k:]
        for h in range(2):
            emitted = [i for i in H[h]['v']] if h == 0 else [i for i in H[1]['v']]
            later = H[1]['v'] if h == 0 else []
            while True:
                room = 2 - used(h) - (grp_units if h == 0 else 0)
                if room <= 0: break
                if h == 0 and later: emitted = emitted + later
                i = pick(lambda i: (units(i) <= room and not (isM(i) and H[h]['v'])) and not (h == 0 and later and any((i.wr & (q.rd | q.wr)) - {'exec'} for q in later)))
                if i is None: break
                if isS(i):
                    (H[h]['s'] if not H[h]['s'] and not H[h]['v'] else H[h]['v']).append(i)
                elif isM(i): H[h]['m'].append(i)
                else: H[h]['v'].append(i)
                emitted.append(i)
        must = max([k for k, e in enumerate(VQ[:60]) if e[3] <= g], default=-1) + 1
        if must == 0 and VQ and VQ[0][1] <= g - LAG: must = 1
        for _ in range(must):
            i = VQ.pop(0)[0]
            H[1]['v'].append(i); over += units(i)
        if waited <= g and g + 1 < NM:
            tgt = [k for k in range(g + 1, min(g + 1 + WB, NM)) if M[k]['rp'] <= g - 2]
            if tgt and tgt[0] == g + 1:
                h = 1 if not H[1]['s'] else (0 if not H[0]['s'] else None)
                if h is not None:
                    w = Ins("s_nop 0", needs=[f"rd{k}" for k in tgt]); w.hide = True; w.ws = 0
                    H[h]['s'].append(w); waited = tgt[-1]
        f, r = m['acc'][0], int(m['acc'][1:])
        for jh in range(2):
            q = r + 8 * jh + 4 * m['cb']
            d = f"{f}[{q}:{q+3}]"
            b(f"v_mfma_f32_16x16x32_bf16 {d}, {m['a']}, {m['b'][jh]}, {'0' if m['c0'] else d}")
            for i in H[jh]['s'] + H[jh]['m'] + H[jh]['v'] + H[jh]['x']:
                b.add(i); slot_of[id(i)] = g
    assert not VQ, len(VQ)
    gen_k3.over = over
    pos = {id(i): k for k, i in enumerate(b.ins)}
    ign = {'exec', 'scc'}
    for k, i in enumerate(orig):
        lo_, hi_ = bounds[id(i)]
        assert lo_ <= slot_of[id(i)] <= hi_, i.text
        for j in orig[k + 1:k + 40]:
            if ((i.wr & (j.rd | j.wr)) | (i.rd & j.wr)) - ign:
                assert pos[id(i)] < pos[id(j)], (i.text, j.text)
    for i in look + tail: b.add(i)
    if stamps and opt.get('tailst'): b(f"{TM} s[54:55]")
    b("s_cmp_eq_u32 s28, 3")
    b(f"s_cbranch_scc1 {name}_poll")
    NL1 = opt.get('nl1', 12)
    for i in look2[:4 * NL1]: b.add(i)
    b(f"s_waitcnt vmcnt({NL1}) lgkmcnt(0)")
    if stamps: b(f"{TM} s[96:97]")
    b("s_barrier")
    for i in look2[4 * NL1:]: b.add(i)
    def accum(regs):
        for r in range(3):
            for e in range(4):
                b(f"v_dot2c_f32_bf16 v{vHf+8*r+2*e}, s46, v{regs[r]+e}")
                b(f"v_dot2c_f32_bf16 v{vHf+8*r+2*e+1}, s31, v{regs[r]+e}")
    b("s_and_b32 s36, s32, 0xff")
    b("s_mov_b32 s37, 1")
    b(f"{name}_tl:")
    b(f"ds_read_b32 v{vPoll}, v{vLw}")
    b(f"v_readfirstlane_b32 s33, v{vPoll}")
    b("s_andn2_b32 s40, s33, s36")
    b(f"s_cbranch_scc0 {name}_tl")
    b(f"{name}_ti:")
    for k in range(4):
        b("s_ff1_i32_b32 s41, s40")
        b("s_bitset1_b32 s36, s41")
        b("s_bitset0_b32 s40, s41")
        b("s_mul_i32 s42, s41, 73728")
        b("s_add_u32 s42, s42, s44")
        for r in (2, 1, 0):
            q = vD + 12 * k + 4 * r
            if r < 2:
                b(f"s_bitcmp1_b32 s{MSK[r]}, s41")
                b("s_cselect_b32 s42, s13, s42")
            b(f"buffer_load_dwordx4 v[{q}:{q+3}], v{vO[r]}, s[24:27], s42 offen sc1", tok='late')
        b(f"s_mov_b32 s43, {k + 1}")
        if k < 3:
            b("s_cmp_eq_u32 s40, 0")
            b(f"s_cbranch_scc1 {name}_tw")
    b(f"{name}_tw:")
    b("s_cmp_eq_u32 s37, 0")
    b(f"s_cbranch_scc1 {name}_ta")
    b("s_mov_b32 s37, 0")
    b("s_waitcnt vmcnt(3)")
    for p in range(8): accum([PREG[p], PREG[8 + p], PREG[16 + p]])
    b(f"{name}_ta:")
    if stamps and opt.get('tailst'): b(f"{TM} s[50:51]")
    b("s_waitcnt vmcnt(0)")
    if stamps and opt.get('tailst'): b(f"{TM} s[52:53]")
    for k in range(4):
        accum([vD + 12 * k, vD + 12 * k + 4, vD + 12 * k + 8])
        if k < 3:
            b(f"s_cmp_eq_u32 s43, {k + 1}")
            b(f"s_cbranch_scc1 {name}_tn")
    b(f"{name}_tn:")
    b("s_cmp_lg_u32 s36, 0xff")
    b(f"s_cbranch_scc1 {name}_tl")
    b("s_nop 2")
    for r in range(3):
        S = vHf + 8 * r
        for i in range(4): b(f"v_permlane16_swap_b32 v{S+i}, v{S+4+i}")
        for e in range(4): b(f"v_cvt_pk_bf16_f32 v{vD+4*r+e}, v{S+2*e}, v{S+2*e+1}")
        b(f"buffer_store_dwordx4 v[{vD+4*r}:{vD+4*r+3}], v{vOa}, s[8:11], s{92+r} offen{opt.get('of', '')}")
    if stamps:
        b("s_waitcnt vmcnt(0)")
        b(f"{TM} s[98:99]")
        b("s_waitcnt lgkmcnt(0)")
        b("v_mov_b32 v16, 0")
        for k in range(22): b(f"v_writelane_b32 v16, s{48+2*k}, {k}")
        b("v_writelane_b32 v16, s96, 22")
        b("v_writelane_b32 v16, s98, 23")
        b("s_lshl_b32 s42, s2, 4\ns_add_u32 s42, s42, s28\ns_lshl_b32 s42, s42, 7")
        b(f"s_add_u32 s42, s42, {ST_OFF}")
        b(f"v_lshlrev_b32 v20, 2, v{vLane}")
        b("s_mov_b32 exec_hi, 0")
        b("buffer_store_dword v16, v20, s[20:23], s42 offen")
        gen_k3.names = ['start'] + [f's{k}' for k in range(1, 22)] + ['e0', 'e1']
    if opt.get('rt'): rt_end(b, 2)
    ins = finalize(b.ins, opt.get('verbose', False))
    spin = "  s_endpgm\n"
    for val in (1, 2, 3):
        spin += f"""{name}_spin{val}:
  s_mov_b32 s42, 0x80000
{name}_spin{val}l:
  s_sleep 2
  buffer_load_dword v{vPoll}, v{vZ}, s[20:23], s30 offen sc1
  s_waitcnt vmcnt(0)
  v_readfirstlane_b32 s40, v{vPoll}
  s_sub_u32 s42, s42, 1
  s_cbranch_scc1 {name}_go{val}
  s_cmp_ge_u32 s40, {val}
  s_cbranch_scc0 {name}_spin{val}l
  s_branch {name}_go{val}
"""
    spin += f"""{name}_poll:
  s_waitcnt vmcnt(0) lgkmcnt(0)
  s_barrier
  buffer_store_dword v{vOne}, v{vFl}, s[20:23], s29 offen sc1
  s_mov_b32 s42, 0x80000
  s_and_b32 s33, s2, 7
  s_lshl_b32 s33, 1, s33
{name}_poll1:
  buffer_load_dword v{vPoll}, v{vFo}, s[20:23], s3 offen sc1
  s_waitcnt vmcnt(0)
  v_cmp_lt_u32 vcc, 2, v{vPoll}
  s_sub_u32 s42, s42, 1
  s_cselect_b32 s40, 0xff, 0
  s_or_b32 s33, s33, s40
  s_and_b32 s40, vcc_lo, 0xff
  s_or_b32 s33, s33, s40
  v_mov_b32 v{vZ}, s33
  ds_write_b32 v{vLw}, v{vZ}
  s_cmp_eq_u32 s33, 0xff
  s_cbranch_scc0 {name}_poll1
"""
    txt = khead(name) + "\n" + render(ins) + "\n" + spin + f"{name}_end:\n  s_endpgm\n"
    gen_k3.cost = cost
    return txt, kdesc(name, NVG, NA, 102), K3_LDS, max(cost)
if __name__ == "__main__":
    gen_k3(opt=dict(verbose=True))
    print('over', gen_k3.over)
```

```python
import sys
import k1, k2, k3
HDR = open('sequential_preLN__spectral_fnet__swiglu_ffn__prompt.s.ref').read().split('; Override launch')[0] if __import__('os').path.exists('sequential_preLN__spectral_fnet__swiglu_ffn__prompt.s.ref') else ''
def build_all(path, o1=None, o2=None, o3=None, o5=None, k3kw=None, extra_launch=()):
    t1, d1, l1, g1 = k1.gen_k1(opt=o1, code_hi='ffn_kernel_end')
    t2, d2, l2, g2 = k2.gen_k2(opt=o2, code_hi='ffn_kernel_end')
    t3, d3, l3, _ = k3.gen_k3(opt=o3, **(k3kw or {}))
    o = [HDR.rstrip(),
         f"; @launch kernel=hid_kernel grid=({g1},1,1) block=(256,1,1) lds={l1}",
         f"; @launch kernel=fft_kernel grid=({g2},1,1) block=(512,1,1) lds={l2}",
         f"; @launch kernel=ffn_kernel grid=(256,1,1) block=(256,1,1) lds={l3}"]
    o += list(extra_launch)
    o += ['.amdgcn_target "amdgcn-amd-amdhsa--gfx950"', ".text", t1, t2, t3, '.section .rodata,"a"', d1, d2, d3]
    open(path, "w").write("\n".join(x for x in o if x) + "\n")
if __name__ == "__main__":
    build_all(sys.argv[1] if len(sys.argv) > 1 else "sequential_preLN__spectral_fnet__swiglu_ffn__prompt.s")
```
